```python
import torch

def _softmax(x, axis=-1):
    return torch.softmax(x, dim=axis)

def _gelu(x):
    return torch.nn.functional.gelu(x, approximate='tanh')

def _silu(x):
    return torch.nn.functional.silu(x)

def _sigmoid(x):
    return torch.sigmoid(x)

def _layernorm(x, axis=-1, eps=1e-05):
    m = x.mean(dim=axis, keepdim=True)
    v = x.var(dim=axis, keepdim=True, unbiased=False)
    return (x - m) / torch.sqrt(v + eps)

def _scatter_add(tgt, idx, src, axis=0):
    return tgt.clone().index_add_(axis, idx, src)

def _segment_sum(src, seg, n):
    out = torch.zeros((n,) + src.shape[1:], dtype=src.dtype)
    return out.index_add_(0, seg, src)

def _pad(x, pw):
    flat = tuple((v for pair in reversed(pw) for v in pair))
    return torch.nn.functional.pad(x, flat)
kernel_name = 'standalone__window_attn_davit__vision'

def setup_inputs():

    _w = lambda a: (lambda t: t.to(torch.bfloat16) if t.is_floating_point() else t)(torch.as_tensor(a))
    HW = 512
    C0 = 96
    ws = 7
    nh = 4
    H = W = max(HW // ws * ws, ws)
    C = max(C0 // nh * nh, nh)
    k = 3
    return {'x': _w((lambda *s: torch.randn(*s, dtype=torch.bfloat16) * 1.6)(1, H, W, C)), 'dw_pe': _w((lambda *s: torch.randn(*s, dtype=torch.bfloat16) * 1.6)(k, k, C) * 0.1), 'w_qkv': _w((lambda *s: torch.randn(*s, dtype=torch.bfloat16) * 1.6)(C, 3 * C) * C ** (-0.5)), 'w_o': _w((lambda *s: torch.randn(*s, dtype=torch.bfloat16) * 0.4)(C, C) * C ** (-0.5))}

def reference(x, dw_pe, w_qkv, w_o):
    B, H, W, C = x.shape
    ws = 7
    nh = 4
    dh = C // nh
    kk = dw_pe.shape[0]
    pad = kk // 2
    xp = _pad(x, ((0, 0), (pad, pad), (pad, pad), (0, 0)))
    pe = torch.zeros_like(x)
    for i in range(kk):
        for j in range(kk):
            pe = pe + xp[:, i:i + H, j:j + W, :] * dw_pe[i, j][None, None, None, :]
    x0 = x + pe
    h = _layernorm(x0, axis=-1)
    hw = h.reshape(B, H // ws, ws, W // ws, ws, C)
    hw = (lambda x, *d: x.permute(*d))(hw, 0, 1, 3, 2, 4, 5)
    hw = hw.reshape(-1, ws * ws, C)
    qkv = (hw @ w_qkv).reshape(-1, ws * ws, 3, nh, dh)
    q = qkv[:, :, 0].clone()
    k = qkv[:, :, 1].clone()
    v = qkv[:, :, 2].clone()
    scale = dh ** (-0.5)
    attn = torch.einsum('wnhd,wmhd->whnm', q, k) * scale
    attn = _softmax(attn, axis=-1)
    out = torch.einsum('whnm,wmhd->wnhd', attn, v)
    out = out.reshape(-1, ws * ws, C) @ w_o
    out = out.reshape(B, H // ws, W // ws, ws, ws, C)
    out = (lambda x, *d: x.permute(*d))(out, 0, 1, 3, 2, 4, 5)
    out = out.reshape(B, H, W, C)
    return x0 + out
```

```python
import re

def vr(i, n=1):
    return f"v{i}" if n == 1 else f"v[{i}:{i+n-1}]"
def sr(i, n=1):
    return f"s{i}" if n == 1 else f"s[{i}:{i+n-1}]"
def V(i, n=1):
    return [f"v{k}" for k in range(i, i+n)]
def S(i, n=1):
    return [f"s{k}" for k in range(i, i+n)]

ISSUE = dict(valu=4, trans=8, mfma32=8, mfma16=4, smfmac=12, dsr=4, dsw=4, vld=4, vst=4, dma=4, salu=4, other=4, perm=8)
MF = ("mfma32", "mfma16", "smfmac")
VA = ("valu", "trans", "perm")

class I:
    __slots__ = ("text", "kind", "rd", "wr", "c", "ab", "prio", "tag", "dpp", "wide")
    def __init__(self, text, kind, rd=(), wr=(), c=(), ab=(), dpp=(), wide=False, tag=None):
        self.text = text; self.kind = kind
        self.rd = list(rd); self.wr = list(wr)
        self.c = list(c)
        self.ab = list(ab)
        self.dpp = list(dpp)
        self.wide = wide
        self.prio = 0; self.tag = tag
    def __repr__(self): return self.text

class B:
    def __init__(self): self.l = []
    def add(self, i): self.l.append(i); return i
    def ext(self, other): self.l.extend(other.l if isinstance(other, B) else other)
    def mfma32(self, d, a, b, c=None):
        cs = "0" if c is None else vr(c, 4)
        cr = [] if c is None else V(c, 4)
        return self.add(I(f"v_mfma_f32_16x16x32_bf16 {vr(d,4)}, {vr(a,4)}, {vr(b,4)}, {cs}", "mfma32",
                          rd=V(a,4)+V(b,4)+cr, wr=V(d,4), c=cr, ab=V(a,4)+V(b,4)))
    def mfma16(self, d, a, b, c=None):
        cs = "0" if c is None else vr(c, 4)
        cr = [] if c is None else V(c, 4)
        return self.add(I(f"v_mfma_f32_16x16x16_bf16 {vr(d,4)}, {vr(a,2)}, {vr(b,2)}, {cs}", "mfma16",
                          rd=V(a,2)+V(b,2)+cr, wr=V(d,4), c=cr, ab=V(a,2)+V(b,2)))
    def smfmac(self, d, a, b, idx):
        return self.add(I(f"v_smfmac_f32_16x16x64_bf16 {vr(d,4)}, {vr(a,4)}, {vr(b,8)}, {vr(idx)}", "smfmac",
                          rd=V(a,4)+V(b,8)+V(idx)+V(d,4), wr=V(d,4), c=V(d,4), ab=V(a,4)+V(b,8)+V(idx)))
    def _regs(self, s):
        out = []
        for m in re.finditer(r"\b([vs])\[(\d+):(\d+)\]|\b([vs])(\d+)\b|\b(vcc|exec|m0|scc)\b", s):
            if m.group(1): out += [f"{m.group(1)}{k}" for k in range(int(m.group(2)), int(m.group(3))+1)]
            elif m.group(4): out.append(f"{m.group(4)}{m.group(5)}")
            else: out.append(m.group(6))
        return out
    def v(self, op, dst, *srcs, kind="valu", rmw=False, mods="", extra_rd=(), extra_wr=()):
        d = dst if isinstance(dst, str) else vr(dst)
        ss = [x if isinstance(x, str) else vr(x) for x in srcs]
        rd = []
        for x in ss: rd += self._regs(x)
        wr = self._regs(d)
        if rmw: rd += wr
        dpp = self._regs(ss[0]) if "dpp" in op else []
        return self.add(I(f"{op} {d}, {', '.join(ss)}{(' ' + mods) if mods else ''}", kind, rd=rd+list(extra_rd)+["exec"], wr=wr+list(extra_wr), dpp=dpp))
    def cvt(self, d, a, b): return self.v("v_cvt_pk_bf16_f32", d, a, b)
    def exp(self, d, a): return self.v("v_exp_f32", d, a, kind="trans")
    def swap(self, op, a, b):
        return self.add(I(f"{op} {vr(a)}, {vr(b)}", "perm", rd=V(a)+V(b)+["exec"], wr=V(a)+V(b), dpp=V(a)+V(b)))
    def s(self, op, dst, *srcs, scc=True, rd_scc=False, nodst=False):
        d = dst if isinstance(dst, str) else sr(dst)
        ss = [x if isinstance(x, str) else str(x) for x in srcs]
        rd = []
        for x in ss: rd += self._regs(x)
        if nodst: rd += self._regs(d); wr = []
        else: wr = self._regs(d)
        if scc: wr = wr + ["scc"]
        if rd_scc: rd = rd + ["scc"]
        return self.add(I(f"{op} {d}" + "".join(", " + x for x in ss), "salu", rd=rd, wr=wr))
    def dsr(self, op, d, n, addr, off=0, mem=(), rmw=False):
        return self.add(I(f"{op} {vr(d,n)}, {vr(addr)}" + (f" offset:{off}" if off else ""), "dsr",
                          rd=V(addr)+["exec"]+["L:"+m for m in mem]+(V(d,n) if rmw else []), wr=V(d,n)))
    def dsw(self, op, addr, d, n, off=0, mem=()):
        return self.add(I(f"{op} {vr(addr)}, {vr(d,n)}" + (f" offset:{off}" if off else ""), "dsw",
                          rd=V(addr)+V(d,n)+["exec"], wr=["L:"+m for m in mem]))
    def bld(self, op, d, n, voff, srd, soff="0", off=0, flags="", rmw=False):
        so = soff if isinstance(soff, str) else sr(soff)
        return self.add(I(f"{op} {vr(d,n)}, {vr(voff)}, {sr(srd,4)}, {so} offen" + (f" offset:{off}" if off else "") + (" "+flags if flags else ""), "vld",
                          rd=V(voff)+S(srd,4)+self._regs(so)+["exec","VM"]+(V(d,n) if rmw else []), wr=V(d,n)+["VM"]))
    def bst(self, op, d, n, voff, srd, soff="0", off=0, flags=""):
        so = soff if isinstance(soff, str) else sr(soff)
        return self.add(I(f"{op} {vr(d,n)}, {vr(voff)}, {sr(srd,4)}, {so} offen" + (f" offset:{off}" if off else "") + (" "+flags if flags else ""), "vst",
                          rd=V(voff)+V(d,n)+S(srd,4)+self._regs(so)+["exec","VM"], wr=["VM"], wide=(n >= 3)))
    def dma(self, voff, srd, soff, flags=""):
        so = soff if isinstance(soff, str) else sr(soff)
        return self.add(I(f"buffer_load_dwordx4 {vr(voff)}, {sr(srd,4)}, {so} offen lds" + (" "+flags if flags else ""), "dma",
                          rd=V(voff)+S(srd,4)+self._regs(so)+["exec","m0","VM"], wr=["VM"]))
    NOSCC = ("s_mov_b32", "s_mov_b64", "s_mul_i32", "s_cselect_b32", "s_cselect_b64", "s_movk_i32", "s_mul_hi_u32")
    RDSCC = ("s_cselect_b32", "s_cselect_b64", "s_addc_u32", "s_subb_u32")
    RMW = ("v_fmac_f32", "v_mov_b32_dpp")
    def x(self, *texts):
        for text in texts:
            for t in text.split(";"):
                t = t.strip()
                if not t: continue
                op, rest = t.split(None, 1)
                ops = [o.strip() for o in rest.split(",")]
                if op.startswith("v_"):
                    kind = "trans" if any(op.startswith(p) for p in ("v_exp", "v_rcp", "v_rsq", "v_log", "v_sqrt")) else "valu"
                    wr = self._regs(ops[0]); rd = []
                    for o in ops[1:]: rd += self._regs(o.split()[0])
                    if op in self.RMW: rd += wr
                    dpp = self._regs(ops[1].split()[0]) if "dpp" in op else []
                    self.add(I(t, kind, rd=rd + ["exec"], wr=wr, dpp=dpp))
                elif op.startswith("s_cmp"):
                    rd = []
                    for o in ops: rd += self._regs(o)
                    self.add(I(t, "salu", rd=rd, wr=["scc"]))
                else:
                    wr = self._regs(ops[0]); rd = []
                    for o in ops[1:]: rd += self._regs(o)
                    if op not in self.NOSCC: wr = wr + ["scc"]
                    if op in self.RDSCC: rd = rd + ["scc"]
                    self.add(I(t, "salu", rd=rd, wr=wr))
    def raw(self, text, rd=(), wr=(), kind="other"):
        return self.add(I(text, kind, rd=rd, wr=wr))

def latency(p, c, reg, typ, P):
    if typ == "raw":
        if reg.startswith("L:") or reg == "VM": return 4
        if p.kind in MF:
            if c.kind in MF and reg in c.c and c.c == p.wr and reg not in c.ab: return 16
            return 36
        if p.kind == "dsr": return P.get("lds_lat", 110)
        if p.kind == "vld": return P.get("vm_lat", 600)
        if p.kind in VA:
            if c.kind in MF: return ISSUE[p.kind] + 8
            if p.kind == "trans": return 12
            if reg.startswith("s") or reg == "vcc": return 12
            if reg in c.dpp: return 12
            return ISSUE[p.kind]
        return 4
    if typ == "war":
        if p.kind in MF and reg in p.c and c.kind in VA: return 16
        return 4
    if p.kind in MF and c.kind not in MF: return 36
    if p.kind == "dsr": return P.get("lds_lat", 110)
    return 4

def schedule(ins, P=None):
    P = P or {}
    n = len(ins)
    scale = P.get("issue_scale", 1.0)
    preds = [dict() for _ in range(n)]
    lastw = {}; readers = {}
    for i, x in enumerate(ins):
        for r in x.rd:
            if r in lastw:
                p = lastw[r]; l = latency(ins[p], x, r, "raw", P)
                preds[i][p] = max(preds[i].get(p, 0), l)
        for r in x.wr:
            if r in lastw:
                p = lastw[r]; l = latency(ins[p], x, r, "waw", P)
                preds[i][p] = max(preds[i].get(p, 0), l)
            for p in readers.get(r, ()):
                if p != i:
                    l = latency(ins[p], x, r, "war", P)
                    preds[i][p] = max(preds[i].get(p, 0), l)
        for r in x.rd: readers.setdefault(r, []).append(i)
        for r in x.wr:
            lastw[r] = i; readers[r] = []
    succs = [dict() for _ in range(n)]
    for i in range(n):
        for p, l in preds[i].items(): succs[p][i] = l
    cp = [0]*n
    for i in range(n-1, -1, -1):
        cp[i] = max([l + cp[s] for s, l in succs[i].items()] + [ISSUE[ins[i].kind]]) + ins[i].prio
    npred = [len(p) for p in preds]
    ready_t = [0]*n
    avail = [i for i in range(n) if npred[i] == 0]
    t = 0; pipe = 0; out = []; ldsfree = 0
    while avail:
        def rt(i):
            r = ready_t[i]
            if ins[i].kind in MF: r = max(r, pipe)
            if ins[i].kind in ("dsr", "dsw"): r = max(r, ldsfree)
            return r
        now = [i for i in avail if rt(i) <= t]
        if now:
            def key(i):
                k = ins[i].kind
                bonus = 0
                if k in ("dsr", "dma", "vld"): bonus = P.get("mem_bonus", 200)
                if k in MF: bonus = P.get("mfma_bonus", 100)
                return (cp[i] + bonus, -i)
            i = max(now, key=key)
        else:
            i = min(avail, key=lambda i: (rt(i), -cp[i], i))
            t = rt(i)
        avail.remove(i); out.append(ins[i])
        k = ins[i].kind
        if k in MF: pipe = t + 16 * P.get("pipe_scale", 1.0)
        if k in ("dsr", "dsw"): ldsfree = t + P.get("lds_gap", 8)
        for s, l in succs[i].items():
            ready_t[s] = max(ready_t[s], t + l)
            npred[s] -= 1
            if npred[s] == 0: avail.append(s)
        t += ISSUE[k] * (scale if k in MF + VA else 1.0)
    assert len(out) == n
    return out, t

def ws_of(x):
    m = re.match(r"s_nop (\d+)", x.text)
    return int(m.group(1)) + 1 if m else 1

def need_ws(p, c):
    n = 0
    pw = set(p.wr); cr = set(c.rd); cw = set(c.wr)
    pwv = {r for r in pw if r[0] == "v" and r != "vcc"}
    if p.kind in MF:
        if c.kind in MF:
            if pwv & set(c.ab): n = max(n, 8)
            if pwv & set(c.c):
                if c.c != p.wr: n = max(n, 6)
        else:
            if pwv & (cr | cw): n = max(n, 8)
        if c.kind in VA and set(p.c) & cw: n = max(n, 3)
    if p.kind in VA:
        if c.kind in MF and pwv & cr: n = max(n, 2)
        if p.kind == "trans" and c.kind in ("valu", "perm") and pwv & cr: n = max(n, 1)
        if pwv & set(c.dpp): n = max(n, 2)
        ps = {r for r in pw if r[0] == "s" or r == "vcc"}
        if ps & cr:
            if c.kind in VA: n = max(n, 4 if ("readlane" in c.text or "writelane" in c.text) else 2)
            if c.kind in ("vld", "vst", "dma"): n = max(n, 5)
        if ("readfirstlane" in c.text or "readlane" in c.text) and pwv & cr: n = max(n, 1)
        if "exec" in pw and c.kind in MF + VA: n = max(n, 5)
    if p.kind == "salu" and "m0" in pw and c.kind == "dma": n = max(n, 1)
    if p.kind == "vst" and p.wide and (set(p.rd) & cw) and c.kind != "vst":
        if {r for r in (set(p.rd) & cw) if r[0] == "v" and r != "vcc"}: n = max(n, 2)
    return n

def finalize(ins, pre=()):
    out = []
    q = []
    vq = []
    hist = list(pre)
    for x in ins:
        if x.text.startswith("s_waitcnt"):
            m = re.search(r"lgkmcnt\((\d+)\)", x.text)
            if m:
                k = int(m.group(1))
                q = q[max(0, len(q)-k):] if k else []
            m = re.search(r"vmcnt\((\d+)\)", x.text)
            if m:
                k = int(m.group(1))
                vq = vq[max(0, len(vq)-k):] if k else []
        touched = set(x.rd) | set(x.wr)
        pos = -1
        for j, d in enumerate(vq):
            if d & touched: pos = j
        if pos >= 0:
            k = min(len(vq) - 1 - pos, 63)
            w = I(f"s_waitcnt vmcnt({k})", "other")
            out.append(w); hist.append(w)
            vq = vq[len(vq)-k:] if k else []
        pos = -1
        for j, d in enumerate(q):
            if d & touched: pos = j
        if pos >= 0:
            k = min(len(q) - 1 - pos, 15)
            w = I(f"s_waitcnt lgkmcnt({k})", "other")
            out.append(w); hist.append(w)
            q = q[len(q)-k:] if k else []
        dist = 0; need = 0
        for p in reversed(hist[-24:]):
            r = need_ws(p, x) - dist
            need = max(need, r)
            dist += ws_of(p)
            if dist >= 9: break
        if need > 0:
            w = I(f"s_nop {need-1}", "other")
            out.append(w); hist.append(w)
        out.append(x); hist.append(x)
        if x.kind == "dsr": q.append({r for r in x.wr})
        elif x.kind == "dsw": q.append(set())
        elif x.kind == "vld": vq.append({r for r in x.wr if r != "VM"})
        elif x.kind in ("vst", "dma"): vq.append(set())
    return out

def text(ins):
    return "\n".join(("" if x.text.endswith(":") else "    ") + x.text for x in ins)

def stats(ins):
    from collections import Counter
    c = Counter(x.kind for x in ins)
    issue = sum(ISSUE[x.kind] for x in ins if x.kind in MF + VA)
    pipe = sum(16 for x in ins if x.kind in MF)
    nops = sum(ws_of(x) for x in ins if x.text.startswith("s_nop"))
    return dict(c), issue, pipe, nops
```

```python
import math, struct, sys
from fw import *

NAME = "standalone__window_attn_davit__vision"
ROWB = 511*192; XBYTES = 511*511*192
def f32(x): return "0x%08x" % struct.unpack("<I", struct.pack("<f", x))[0]

ZERO = 0; PXS = 32; PATCH0 = 544; PIX = 208; PROW = 9*PIX
H = PATCH0 + 81*PIX; Y0 = H + 9216; assert Y0 + 6144 <= 32768
PATCH1 = PATCH0 + 32768; O = H + 32768; Y1 = Y0 + 32768
CONVW = Y1 + 6144; CONVW2 = CONVW + 12*544; TAB = CONVW2 + 6*144; TABH = 11*192
LDS_END = TAB + 4*TABH; assert LDS_END <= 81920, LDS_END
LDS_BYTES = 81920

sX, sOUT, sDW, sWQ, sWO = 4, 8, 12, 16, 20
sWAVE, sNW, sSTEP, sWX, sO, sWX2, sO2, sROWB, sM0W, sM05, sPAR = [f"s{i}" for i in range(24, 35)]
sT0, sT1, sT2, sT3, sT4 = [f"s{i}" for i in range(35, 40)]
def pair(i): return f"s[{i}:{i+1}]"
sG1, sG2, sG3, sMS, sML, sMR, sM5, sBAD, sCM = [pair(i) for i in (40, 42, 44, 46, 48, 50, 52, 58, 60)]
sMLlo, sMLhi, sMRlo, sMRhi, sCMlo, sCMhi = "s48", "s49", "s50", "s51", "s60", "s61"
sEPS, sB5, sW0, sW1 = "s54", "s55", "s56", "s57"
sWS = 76
vDA, vDB, vD5, vTab, vTabV, vPXr, vACC = 2, 3, 4, 5, 6, 7, 8
vT = [0, 1, 9, 10, 11]
K = [16, 20, 24]; Q = [28, 32, 36]; VA_, VB_ = 40, 48; P = [56, 64, 72]
vL16, vOw1, vOw2, vD0, vPXw, vPXd = 31, 35, 39, 63, 71, 79
OX = 80; VONES = 88
HB = [92, 104]; POOL = [116, 120, 124, 128, 132, 136]
SEL = 140; WO = 148; WQ = 196
X0K = 172; ONES = 180
vConv, vCW, vCW2, vDiag = 12, 13, 14, 15
vOutA, vIdx, vOwn, vY = 188, 189, 190, 191
vOutB = [12, 13, 14]; vYB = 15

A_SCALE = math.sqrt(24**-0.5 * math.log2(math.e))
BIG = 2.0**80

SP = dict(issue_scale=1.6, pipe_scale=1.6, lds_lat=120, lds_gap=8)
O_ = lambda t: I(t, "other")

def wq(F, s): return WQ + (F*3 + s)*4

class Pool:
    def __init__(self, regs): self.r = list(regs); self.i = 0
    def get(self):
        x = self.r[self.i % len(self.r)]; self.i += 1; return x

def qkv_tile(b, hb, pool, kd, qd, va, vb):
    def chain(F, swap, c0=None):
        d = pool.get()
        for s in range(3):
            a, bb = (hb + 4*s, wq(F, s)) if swap else (wq(F, s), hb + 4*s)
            b.mfma32(d, a, bb, (c0 if s == 0 else d))
        return d
    d = chain(1, False); b.cvt(kd, d, d+1); b.cvt(kd+1, d+2, d+3)
    d = chain(2, False); b.cvt(qd+2, d, d+1); b.cvt(kd+2, d+2, d+3)
    d = chain(0, False); b.cvt(qd, d, d+1); b.cvt(qd+1, d+2, d+3)
    d = chain(3, True); b.cvt(va, d, d+1); b.cvt(va+1, d+2, d+3)
    d = chain(4, True, VONES); b.cvt(vb, d, d+1); b.cvt(vb+1, d+2, d+3)

def onorm(b, oa, ob, t0, j, first=None, check=True, base=None, aw=(vOw1, vOw2)):
    base = O + j*3072 if base is None else base
    b.x(f"v_rcp_f32 v{t0}, v{ob+2}")
    if check:
        b.x(f"v_maximum3_f32 v{vACC}, v{ob+2}, v{t0}, v{first if first is not None else vACC}")
    b.x(f"v_mul_f32 v{t0}, {f32(1.0/A_SCALE)}, v{t0}")
    for r in (oa, oa+1, oa+2, oa+3, ob, ob+1):
        b.x(f"v_mul_f32 v{r}, v{r}, v{t0}")
    b.cvt(oa, oa, oa+1); b.cvt(oa+1, oa+2, oa+3); b.cvt(ob, ob, ob+1)
    b.dsw("ds_write_b64", aw[0], oa, 2, base, mem=["O"])
    b.dsw("ds_write_b32", aw[1], ob, 1, base + 2048, mem=["O"])

def adv(b, wx, o, t):
    b.x(f"s_add_u32 {wx}, {wx}, 1; s_cmp_eq_u32 {wx}, 73; s_cselect_b32 {t}, {6*ROWB}, 0; s_cselect_b32 {wx}, 0, {wx}",
        f"s_add_u32 {o}, {o}, {t}; s_add_u32 {o}, {o}, 1344")

def dma_issue(b):
    b.x(f"s_add_u32 {sT0}, {sSTEP}, 2; s_cmp_lt_u32 {sT0}, {sNW}; s_cselect_b32 {sT0}, {sO2}, 2.0",
        f"s_cmp_eq_u32 {sWX2}, 0; s_cselect_b32 {sMLlo}, 0xfff, 0",
        f"s_cmp_eq_u32 {sWX2}, 72; s_cselect_b32 {sMRhi}, 0xfff00000, 0",
        f"s_cmp_eq_u32 {sB5}, 0; s_cselect_b64 {sM5}, {sML}, {sMR}",
        f"v_cndmask_b32 v{vDA}, v{vD0}, 2.0, {sML}; v_cndmask_b32 v{vDB}, v{vD0}, 2.0, {sMR}; v_cndmask_b32 v{vD5}, v{vD0}, 2.0, {sM5}",
        f"s_add_u32 {sT1}, {sT0}, {sROWB}; s_add_u32 {sT2}, {sT1}, {ROWB}",
        f"s_cmp_lt_i32 {sT1}, 0; s_cselect_b32 {sT1}, 2.0, {sT1}",
        f"s_add_u32 {sT3}, {sM0W}, {sPAR}; s_mov_b32 m0, {sT3}")
    b.dma(vDA, sX, sT1)
    b.x(f"s_add_u32 {sT1}, {sT1}, 768; s_add_u32 m0, {sT3}, {4*PIX}")
    b.dma(vDB, sX, sT1)
    b.x(f"s_add_u32 m0, {sT3}, {PROW}")
    b.dma(vDA, sX, sT2)
    b.x(f"s_add_u32 {sT2}, {sT2}, 768; s_add_u32 m0, {sT3}, {PROW + 4*PIX}")
    b.dma(vDB, sX, sT2)
    b.x(f"s_add_u32 {sT0}, {sT0}, {7*ROWB}; s_add_u32 {sT0}, {sT0}, {sB5}; s_add_u32 m0, {sM05}, {sPAR}")
    b.dma(vD5, sX, sT0)
    b.x(f"s_xor_b32 {sPAR}, {sPAR}, 0x8000")
    adv(b, sWX2, sO2, sT4)

def p2_fast():
    b = B()
    pool = Pool(POOL)
    hbs = [HB[0], HB[1], HB[0]]
    def hload(j):
        for s in range(3):
            b.dsr("ds_read_b128", hbs[j] + 4*s, 4, vL16, H + j*3072 + s*1024, mem=["H"])
    def stile(kt, j):
        d = pool.get()
        b.mfma32(d, K[kt], Q[j])
        for i in range(4): b.exp(d+i, d+i)
        b.cvt(P[j] + 2*kt, d, d+1); b.cvt(P[j] + 2*kt + 1, d+2, d+3)
    hload(0); hload(1)
    b.dsr("ds_read_u16", VA_+6, 1, vTabV, 0)
    b.dsr("ds_read_u16", VB_+6, 1, vTabV, 32)
    dma_issue(b)
    qkv_tile(b, hbs[0], pool, K[0], Q[0], VA_, VB_)
    hload(2)
    stile(0, 0)
    qkv_tile(b, hbs[1], pool, K[1], Q[1], VA_+2, VB_+2)
    kx, qx = HB[1], HB[1] + 4
    b.dsr("ds_read_b128", kx, 4, vTab, 0)
    b.dsr("ds_read_b128", qx, 4, vTab, 64)
    stile(1, 0); stile(0, 1); stile(1, 1)
    qkv_tile(b, hbs[2], pool, K[2], Q[2], VA_+4, VB_+4)
    def xkey(j):
        d = pool.get()
        b.mfma32(d, kx, Q[j])
        b.exp(d, d)
        b.cvt(P[j] + 6, d, d)
    t = vT[0]
    for kt in range(4):
        d = pool.get()
        b.mfma32(d, qx, K[kt] if kt < 3 else kx)
        if kt == 0: d0 = d
        else: b.x(f"v_cndmask_b32 v{t}, v{d0 if kt == 1 else t}, v{d}, {[sG1, sG2, sG3][kt-1]}")
    b.exp(t, t)
    b.x(f"v_cmp_le_f32 vcc, {f32(1.0/BIG)}, v{t}")
    b.cvt(vT[1], t, t)
    b.dsw("ds_write_b16", vPXw, vT[1], 1, 0, mem=["PX"])
    b.x(f"s_cmp_eq_u64 vcc, 0; s_cselect_b64 {sBAD}, -1, 0")
    xkey(0); stile(2, 0)
    def pv(j, oa, ob):
        b.mfma32(oa, VA_, P[j]); b.mfma32(ob, VB_, P[j])
        b.mfma32(oa, VA_+4, P[j]+4, oa); b.mfma32(ob, VB_+4, P[j]+4, ob)
    pv(0, HB[0], HB[0]+4)
    xkey(1); stile(2, 1)
    onorm(b, HB[0], HB[0]+4, vT[2], 0, first=t)
    pv(1, HB[0]+8, HB[1]+8)
    xkey(2); stile(0, 2); stile(1, 2); stile(2, 2)
    onorm(b, HB[0]+8, HB[1]+8, vT[3], 1)
    d1, d2 = pool.get(), pool.get()
    pv(2, d1, d2)
    onorm(b, d1, d2, vT[2], 2)
    b.x(f"v_cmp_nge_f32 vcc, {f32(BIG)}, v{vACC}; s_or_b64 {sBAD}, {sBAD}, vcc")
    return b

def p2_tail():
    b = B()
    px = HB[0]
    b.x(f"v_cndmask_b32 v{vPXr}, 0, v{vPXd}, {sMS}")
    b.dsr("ds_read_b128", px, 4, vPXr, 0, mem=["PX"])
    b.dsr("ds_read_b128", px+4, 4, vPXr, 16, mem=["PX"])
    b.x(f"v_add_u32 v{vTab}, 0xc0, v{vTab}; v_add_u32 v{vTabV}, 0xc0, v{vTabV}; s_lshl_b64 {sMS}, {sMS}, 1")
    b.mfma32(OX, VA_, px, OX); b.mfma32(OX+4, VB_, px, OX+4)
    b.mfma32(OX, VA_+4, px+4, OX); b.mfma32(OX+4, VB_+4, px+4, OX+4)
    return b

def xgroup_max(b, m, t):
    b.x(f"v_mov_b32 v{t}, v{m}"); b.swap("v_permlane32_swap_b32", m, t); b.x(f"v_max_f32 v{m}, v{m}, v{t}")
    b.x(f"v_mov_b32 v{t}, v{m}"); b.swap("v_permlane16_swap_b32", m, t); b.x(f"v_max_f32 v{m}, v{m}, v{t}")

def p2_slow():
    b = B()
    kx, qx = HB[1], HB[1] + 4
    S_ = POOL[:4]; m, t = vT[2], vT[3]
    for j in range(3):
        for kt in range(4):
            b.mfma32(S_[kt], K[kt] if kt < 3 else kx, Q[j])
        regs = [S_[kt] + i for kt in range(3) for i in range(4)] + [S_[3]]
        b.x(f"v_mov_b32 v{m}, v{regs[0]}")
        for r in regs[1:]: b.x(f"v_max_f32 v{m}, v{m}, v{r}")
        xgroup_max(b, m, t)
        for r in regs:
            b.x(f"v_sub_f32 v{r}, v{r}, v{m}"); b.exp(r, r)
        for kt in range(3):
            b.cvt(P[j] + 2*kt, S_[kt], S_[kt]+1); b.cvt(P[j] + 2*kt + 1, S_[kt]+2, S_[kt]+3)
        b.cvt(P[j] + 6, S_[3], S_[3])
        oa, ob = POOL[4], POOL[5]
        b.mfma32(oa, VA_, P[j]); b.mfma32(ob, VB_, P[j])
        b.mfma32(oa, VA_+4, P[j]+4, oa); b.mfma32(ob, VB_+4, P[j]+4, ob)
        onorm(b, oa, ob, m, j, check=False)
    x = vT[0]
    for kt in range(4):
        b.mfma32(S_[kt], qx, K[kt] if kt < 3 else kx)
    b.x(f"v_cndmask_b32 v{x}, v{S_[0]}, v{S_[1]}, {sG1}; v_cndmask_b32 v{x}, v{x}, v{S_[2]}, {sG2}; v_cndmask_b32 v{x}, v{x}, v{S_[3]}, {sG3}")
    b.x(f"v_mov_b32 v{m}, v{x}")
    xgroup_max(b, m, t)
    for sh in (1, 2, 4, 8):
        b.x(f"v_mov_b32_dpp v{t}, v{m} row_ror:{sh} row_mask:0xf bank_mask:0xf; v_max_f32 v{m}, v{m}, v{t}")
    b.x(f"v_sub_f32 v{x}, v{x}, v{m}"); b.exp(x, x)
    b.cvt(vT[1], x, x)
    b.dsw("ds_write_b16", vPXw, vT[1], 1, 0, mem=["PX"])
    return b

def p1(b, R, bsrc=None):
    X = R["X"]
    for t in range(6):
        a0, a1, a2 = R["A"][t % len(R["A"])]
        b.dsr("ds_read_b64", a2, 2, R["vCW2"], t*144)
        b.dsr("ds_read_b128", a0, 4, R["vCW"], (2*t)*544)
        b.dsr("ds_read_b128", a1, 4, R["vCW"], (2*t+1)*544)
        if bsrc is None:
            b0, b1, b2 = R["B"][t % len(R["B"])]
            def tap(dst, tau):
                b.dsr("ds_read_b64", dst, 2, R["vConv"], (9*(tau//3) + tau % 3)*PIX + 32*t, mem=["PATCH"])
            tap(b2, 8)
            for sg in range(4): tap(b0 + 2*sg, sg)
            for sg in range(4): tap(b1 + 2*sg, 4 + sg)
        else:
            b0, b1, b2 = bsrc(t)
        b.mfma16(X[t], a2, b2)
        b.smfmac(X[t], a0, b0, R["vIdx"])
        b.smfmac(X[t], a1, b1, R["vIdx"])
    Y = R["Y"]; G, S1 = R["G"], R["S1"]
    for t in range(6):
        y = Y[t//2] + 2*(t & 1)
        b.cvt(y, X[t], X[t]+1); b.cvt(y + 1, X[t]+2, X[t]+3)
    for s in range(3):
        b.mfma32(G, Y[s], Y[s], None if s == 0 else G)
    for s in range(3):
        b.mfma32(S1, R["ONES"], Y[s], None if s == 0 else S1)
    R["ywrite"](b, Y)
    b.dsw("ds_write_b128", R["vOwn"], G, 4, R["hbase"], mem=["H"])
    s2, u, ra = G, G+1, G+2
    b.dsr("ds_read_b32", s2, 1, R["vDiag"], R["hbase"], mem=["H"])
    b.x(f"v_fma_f32 v{u}, -v{S1}, v{S1}, {sEPS}",
        f"v_fmamk_f32 v{u}, v{s2}, {f32(96.0)}, v{u}",
        f"v_max_f32 v{u}, {f32(9216.0*1e-5)}, v{u}",
        f"v_rsq_f32 v{u}, v{u}",
        f"v_mul_f32 v{ra}, {f32(-A_SCALE)}, v{u}",
        f"v_mul_f32 v{u}, {f32(96.0*A_SCALE)}, v{u}",
        f"v_mul_f32 v{ra}, v{ra}, v{S1}")
    HO = R["HO"]; XT = R["XT"]
    for t in range(6):
        for i in range(4):
            b.x(f"v_fma_f32 v{XT[t]+i}, v{X[t]+i}, v{u}, v{ra}")
        b.cvt(HO + 2*t, XT[t], XT[t]+1); b.cvt(HO + 2*t + 1, XT[t]+2, XT[t]+3)
        if t & 1:
            b.dsw("ds_write_b128", R["vOwn"], HO + 2*(t-1), 4, R["hbase"] + (t//2)*1024, mem=["H"])

def RA():
    def yw(b, Y):
        b.dsw("ds_write_b128", vY, Y[0], 4, Y0, mem=["Y"])
        b.dsw("ds_write_b128", vY, Y[1], 4, Y0 + 1024, mem=["Y"])
    X = [124, 128, 132, 136, X0K, X0K+4]
    return dict(X=X, A=[(56, 64, 60), (72, 40, 68)], B=[(92, 100, 44), (108, 116, 52)],
                vCW=vCW, vCW2=vCW2, vConv=vConv, vIdx=vIdx, ONES=ONES, vOwn=vOwn, vDiag=vDiag, hbase=H,
                Y=[140, 144, 184], G=192, S1=48, HO=92, XT=[124, 128, 132, 136, 104, 108], ywrite=yw)

def p3a(b, obase=O, addr=vOwn, x0=X0K, vout=vOutA, soff=sO):
    OB = [140, 144, 184]
    for s in range(3):
        b.dsr("ds_read_b128", OB[s], 4, addr, obase + s*1024, mem=["O"])
    for s in range(3):
        for t in range(2):
            b.mfma32(x0 + 4*t, WO + (t*3 + s)*4, OB[s], x0 + 4*t)
    for t, d in ((0, 192), (1, 194)):
        b.cvt(d, x0 + 4*t, x0 + 4*t + 1); b.cvt(d+1, x0 + 4*t + 2, x0 + 4*t + 3)
        b.bst("buffer_store_dwordx2", d, 2, vout, sOUT, soff, 32*t)

def t_a():
    b = B()
    p3a(b)
    p1(b, RA())
    b.x(f"v_xor_b32 v{vConv}, 0x8000, v{vConv}; v_xor_b32 v{vY}, 0x8000, v{vY}")
    adv(b, sWX, sO, sT4)
    return b

def p3b_tile(b, regs, oaddr, obase, yload, vout, soff):
    OB, YB, D, OUTR = regs
    for s in range(3):
        b.dsr("ds_read_b128", OB + 4*s, 4, oaddr, obase + s*1024, mem=["O"])
    yload(b, YB)
    for so in range(2):
        for hh in range(2):
            d = D[so*2 + hh]
            b.mfma32(d, SEL + 4*hh, YB + 4*so)
            for s in range(3):
                b.mfma32(d, WO + ((so*2 + hh)*3 + s)*4, OB + 4*s, d)
            b.cvt(OUTR[so] + 2*hh, d, d+1); b.cvt(OUTR[so] + 2*hh + 1, d+2, d+3)
        b.bst("buffer_store_dwordx4", OUTR[so], 4, vout, sOUT, soff, 64*so)

def t_b():
    b = B()
    sets = [(92, 104, [132, 136, 56, 64], [72, 40]), (112, 124, [132, 136, 56, 64], [48, 72]), (92, 104, [132, 136, 56, 64], [40, 48])]
    for j in range(3):
        def yl(b, YB, j=j):
            for so in range(2):
                b.dsr("ds_read_b128", YB + 4*so, 4, vYB, Y0 + j*2048 + so*1024, mem=["Y"])
        p3b_tile(b, sets[j], vL16, O + j*3072, yl, vOutB[j], sO)
    b.x(f"v_xor_b32 v{vYB}, 0x8000, v{vYB}")
    adv(b, sWX, sO, sT4)
    return b

n, g, ln = "v9", "v10", "v11"
def srd(b, s, ptr, size, bias=0):
    if bias: b.x(f"s_sub_u32 s{s}, s{ptr}, {bias}; s_subb_u32 s{s+1}, s{ptr+1}, 0")
    else: b.x(f"s_mov_b32 s{s}, s{ptr}; s_mov_b32 s{s+1}, s{ptr+1}")
    b.x(f"s_mov_b32 s{s+2}, {size + bias}; s_mov_b32 s{s+3}, 0x20000")

def build_sel(b, dst, T):
    b.x(f"v_sub_u32 v5, {T}, v7; v_and_b32 v6, 1, v5; v_lshlrev_b32 v6, 4, v6; v_lshlrev_b32 v6, v6, v8; v_lshrrev_b32 v5, 1, v5")
    for r in range(4):
        b.x(f"v_cmp_eq_u32 {sCM}, {r}, v5; v_cndmask_b32 v{dst+r}, 0, v6, {sCM}")

def tok_rc(b):
    b.x("v_mul_u32_u24 v5, 37, v1; v_lshrrev_b32 v5, 8, v5; v_mul_u32_u24 v6, 7, v5; v_sub_u32 v6, v1, v6; v_sub_u32 v5, 6, v5")

def wprep(b, raw, sel, D):
    b.x(f"v_mov_b32 v8, 0x3f80; v_lshlrev_b32 v7, 3, {g}")
    build_sel(b, sel, n)
    b.x(f"v_lshrrev_b32 v1, 2, {n}; v_lshlrev_b32 v1, 1, v1; v_and_b32 v5, 1, {n}; v_add3_u32 v1, v1, v5, 16",
        f"v_and_b32 v5, 2, {n}; v_lshlrev_b32 v5, 5, v5; v_add_u32 v{D[0]}, v1, v5",
        f"v_xor_b32 v5, 64, v5; v_add_u32 v{D[0]+1}, v1, v5")
    build_sel(b, sel+4, f"v{D[0]}")
    build_sel(b, sel+8, f"v{D[0]+1}")
    pool = Pool(D)
    c = B()
    for kb in range(6):
        rq, rk, rv = raw + kb*4, raw + (6+kb)*4, raw + (12+kb)*4
        for F, ops in ((0, [(rq, sel)]), (1, [(rk, sel)]), (2, [(rq, sel+4), (rk, sel+8)]), (3, [(rv, sel)]), (4, [(rv, sel+4)])):
            d = pool.get()
            for i, (a, s_) in enumerate(ops):
                c.mfma32(d, a, s_, None if i == 0 else d)
            o = wq(F, kb//2) + 2*(kb & 1)
            c.cvt(o, d, d+1); c.cvt(o+1, d+2, d+3)
    b.ext(schedule(c.l, SP)[0])

def wo_loads(b, raw, cbs):
    b.x(f"v_mul_u32_u24 v1, 0xc0, {n}; v_lshl_add_u32 v1, {g}, 4, v1",
        f"v_bfe_u32 v5, {n}, 1, 1; v_mul_u32_u24 v5, 24, v5; v_lshrrev_b32 v6, 2, {n}; v_lshl_add_u32 v5, v6, 1, v5",
        f"v_and_b32 v6, 1, {n}; v_add3_u32 v5, v5, v6, 16; v_mul_u32_u24 v5, 0xc0, v5; v_lshl_add_u32 v5, {g}, 4, v5")
    for rb in range(6):
        sp, jh = rb // 2, rb & 1
        rowoff = (24*(2*sp + jh) if sp < 2 else 48*jh) * 192
        b.x(f"s_mov_b32 {sT0}, {rowoff}")
        for ci, cb in enumerate(cbs):
            b.bld("buffer_load_dwordx4", raw + (rb*len(cbs) + ci)*4, 4, 1 if sp < 2 else 5, sWO, sT0, 64*cb)

def wo_prep(b, raw, ncb, sels, D):
    pool = Pool(D)
    c = B()
    for rb in range(6):
        for ci in range(ncb):
            for v_ in range(2):
                d = pool.get()
                c.mfma32(d, raw + (rb*ncb + ci)*4, sels[v_])
                o = WO + ((ci*2 + v_)*3 + rb//2)*4 + 2*(rb & 1)
                c.cvt(o, d, d+1); c.cvt(o+1, d+2, d+3)
    b.ext(schedule(c.l, SP)[0])

def conv_consts(b, cw, cw2, idx, ones, diag, own_add):
    b.x(f"v_bfe_u32 v1, {n}, 2, 1; v_mul_u32_u24 v1, 9, v1; v_lshrrev_b32 v5, 3, {n}; v_lshl_add_u32 v1, v5, 2, v1",
        f"v_and_b32 v6, 3, {n}; v_add_u32 v1, v1, v6; v_and_b32 v6, 1, {g}",
        f"v_cmp_eq_u32 {sCM}, v6, v5; v_cndmask_b32 v1, 8, v1, {sCM}",
        f"v_lshrrev_b32 v5, 1, {g}; v_mul_u32_u24 v5, 17, v5; v_add_u32 v1, v1, v5; v_lshlrev_b32 v1, 4, v1; v_add_u32 v{cw}, {CONVW}, v1",
        f"v_lshrrev_b32 v1, 2, {n}; v_cmp_eq_u32 {sCM}, v1, {g}; v_cndmask_b32 v5, 16, {n}, {sCM}",
        f"v_lshlrev_b32 v5, 3, v5; v_add_u32 v{cw2}, {CONVW2}, v5",
        f"v_and_b32 v5, 3, {n}; v_mul_u32_u24 v{idx}, 0x5555, v5")
    for i in range(4): b.x(f"v_mov_b32 v{ones+i}, 0x3f803f80")
    b.x(f"v_lshl_add_u32 v1, v1, 4, {n}; v_lshlrev_b32 v1, 4, v1; v_lshl_add_u32 v{diag}, v5, 2, v1")
    if own_add is not None: b.x(f"v_add_u32 v{diag}, {own_add}, v{diag}")

def xaddr(b, dst, t0, t1, wx, o):
    b.x(f"s_sub_u32 {sT0}, {sNW}, 1; v_min_u32 v{t0}, {sT0}, {n}; v_add_u32 v{t1}, {wx}, v{t0}",
        f"v_cmp_lt_u32 vcc, 0x48, v{t1}; v_mov_b32 v{t1}, {6*ROWB}; v_cndmask_b32 v{t1}, 0, v{t1}, vcc",
        f"v_mul_u32_u24 v{t0}, {1344}, v{t0}; v_add3_u32 v{dst}, v{t0}, v{t1}, {o}; v_add_u32 v{dst}, {4*ROWB + 2*192}, v{dst}")

D0 = 244
def wraw_loads(b, raw):
    b.x(f"v_mul_u32_u24 v1, {576}, {n}; v_lshl_add_u32 v1, {g}, 4, v1; s_mul_i32 {sT1}, {sWAVE}, 48")
    for kb in range(6):
        b.x(f"s_add_u32 {sT0}, {sT1}, {kb*16*576}")
        for w in range(3):
            b.bld("buffer_load_dwordx4", raw + (w*6 + kb)*4, 4, 1, sWQ, sT0, 192*w)

def common_consts(b):
    b.x(f"v_lshlrev_b32 v{vL16}, 4, {ln}",
        f"s_lshr_b32 {sT0}, {sWAVE}, 1; s_lshl_b32 {sT0}, {sT0}, 10; s_and_b32 {sT1}, {sWAVE}, 1; s_lshl_b32 {sT1}, {sT1}, 3; s_add_u32 {sT0}, {sT0}, {sT1}",
        f"v_add_u32 v{vOw1}, {sT0}, v{vL16}",
        f"s_lshl_b32 {sT0}, {sWAVE}, 2; v_add_u32 v{vOw2}, {sT0}, v{vL16}",
        f"s_lshl_b32 {sT0}, {sWAVE}, 7; s_add_u32 {sT0}, {sT0}, {PXS}",
        f"v_lshlrev_b32 v1, 5, {g}; v_add_u32 v{vPXd}, {sT0}, v1",
        f"v_lshrrev_b32 v1, 2, {n}; v_lshlrev_b32 v1, 5, v1; v_lshl_add_u32 v1, {g}, 3, v1",
        f"v_and_b32 v5, 3, {n}; v_lshl_add_u32 v1, v5, 1, v1; v_add_u32 v{vPXw}, {sT0}, v1")
    for r in (19, 23, 27, 47, 55): b.x(f"v_mov_b32 v{r}, 0")
    for i in range(8): b.x(f"v_mov_b32 v{OX+i}, 0")
    b.x(f"v_cmp_eq_u32 {sCM}, 2, v5")
    for i in range(4): b.x(f"v_cndmask_b32 v{VONES+i}, 0, 1.0, {sCM}")

def convw_build(b):
    q = 240; d0 = D0
    b.x(f"v_bfe_u32 v1, {n}, 2, 1; v_mul_u32_u24 v1, 9, v1; v_lshrrev_b32 v5, 3, {n}; v_lshl_add_u32 v1, v5, 2, v1",
        f"v_and_b32 v5, 3, {n}; v_add_u32 v1, v1, v5; v_mul_u32_u24 v5, 17, {g}; v_add_u32 v1, v1, v5; v_lshlrev_b32 v1, 4, v1",
        f"s_mul_i32 {sT0}, {sWAVE}, 1088; s_add_u32 {sT0}, {sT0}, {CONVW}; v_add_u32 v1, {sT0}, v1",
        f"v_cndmask_b32 v6, 0, 1.0, {sG2}; v_or_b32 v{d0}, v{d0}, v6; v_or_b32 v{d0+2}, v{d0+2}, v6",
        f"v_and_b32 v5, 4, {n}; v_cmp_eq_u32 {sCM}, 0, v5")
    for rnd in range(2):
        a = d0 + 2*rnd
        b.x(f"v_cndmask_b32 v{q}, 0, v{a}, {sCM}; v_cndmask_b32 v{q+1}, 0, v{a+1}, {sCM}",
            f"v_cndmask_b32 v{q+2}, v{a}, 0, {sCM}; v_cndmask_b32 v{q+3}, v{a+1}, 0, {sCM}")
        if rnd == 1:
            b.x(f"s_cmp_lt_u32 {sWAVE}, 2; s_cselect_b64 exec, -1, 0")
        b.dsw("ds_write_b128", 1, q, 4, rnd*8*544, mem=["CW"])
    b.x("s_mov_b64 exec, -1")
    for i in range(4): b.x(f"v_mov_b32 v{q+i}, 0")
    b.x(f"v_mul_u32_u24 v1, 0x110, v0; v_add_u32 v1, {CONVW + 128}, v1; v_lshlrev_b32 v5, 4, v0",
        f"v_mul_u32_u24 v6, 0x90, v0; v_add_u32 v6, {CONVW2 + 128}, v6",
        f"v_cmp_gt_u32 {sCM}, 24, v0; s_mov_b64 exec, {sCM}")
    b.dsw("ds_write_b128", 1, q, 4, 0, mem=["CW"])
    b.x(f"v_cmp_gt_u32 {sCM}, 6, v0; s_mov_b64 exec, {sCM}")
    b.dsw("ds_write_b64", 6, q, 2, 0, mem=["CW"])
    b.x(f"v_cmp_gt_u32 {sCM}, 2, v0; s_mov_b64 exec, {sCM}")
    b.dsw("ds_write_b128", 5, q, 4, ZERO, mem=["CW"])
    b.x("s_mov_b64 exec, -1",
        f"v_and_b32 v5, 1, {n}; v_lshlrev_b32 v5, 4, v5; v_lshlrev_b32 v{d0+4}, v5, v{d0+4}",
        f"v_and_b32 v5, 2, {n}; v_cmp_eq_u32 {sCM}, 0, v5",
        f"v_cndmask_b32 v{q}, 0, v{d0+4}, {sCM}; v_cndmask_b32 v{q+1}, v{d0+4}, 0, {sCM}",
        f"v_lshrrev_b32 v1, 4, v0; v_mul_u32_u24 v1, 0x90, v1; v_lshl_add_u32 v1, {n}, 3, v1; v_add_u32 v1, {CONVW2}, v1",
        f"v_cmp_gt_u32 vcc, 0x60, v0; s_mov_b64 exec, vcc")
    b.dsw("ds_write_b64", 1, q, 2, 0, mem=["CW"])
    b.x("s_mov_b64 exec, -1")
    b.raw("s_waitcnt lgkmcnt(0)"); b.raw("s_barrier")

def prologue():
    out = []
    b = B()
    b.raw("s_cmp_ge_u32 s2, 512"); b.raw("s_cbranch_scc1 L_end")
    b.raw("s_load_dwordx8 s[64:71], s[0:1], 0"); b.raw("s_load_dwordx2 s[72:73], s[0:1], 32"); b.raw("s_load_dwordx2 s[74:75], s[0:1], 48")
    b.x(f"v_lshrrev_b32 v1, 6, v0; v_and_b32 {ln}, 63, v0; v_readfirstlane_b32 {sWAVE}, v1; v_and_b32 {n}, 15, v0; v_bfe_u32 {g}, v0, 4, 2",
        f"s_and_b32 {sT0}, s2, 7; s_lshr_b32 {sT1}, s2, 3; s_cmp_eq_u32 {sT0}, 0; s_cselect_b32 {sT2}, 27, 26; s_cselect_b32 {sT3}, 0, 1",
        f"s_mul_i32 {sT0}, {sT0}, 666; s_add_u32 {sT0}, {sT0}, {sT3}; s_mul_i32 {sT3}, {sT1}, 10; s_add_u32 {sT0}, {sT0}, {sT3}",
        f"s_min_u32 {sT3}, {sT1}, {sT2}; s_add_u32 {sW0}, {sT0}, {sT3}; s_cmp_lt_u32 {sT1}, {sT2}; s_cselect_b32 {sNW}, 11, 10",
        f"s_mul_i32 {sT0}, {sW0}, 57457; s_lshr_b32 {sT0}, {sT0}, 22; s_mul_i32 {sT1}, {sT0}, 73; s_sub_u32 {sWX}, {sW0}, {sT1}",
        f"s_mul_i32 {sO}, {sT0}, {7*ROWB}; s_mul_i32 {sT1}, {sWX}, 1344; s_add_u32 {sO}, {sO}, {sT1}",
        f"s_mov_b32 {sWX2}, {sWX}; s_mov_b32 {sO2}, {sO}; s_mov_b32 {sW0}, {sWX}; s_mov_b32 {sW1}, {sO}",
        f"s_lshl_b32 {sT0}, {sWAVE}, 1; s_mul_i32 {sM0W}, {sT0}, {PROW}; s_add_u32 {sM0W}, {sM0W}, {PATCH0}",
        f"s_sub_u32 {sT0}, {sT0}, 1; s_mul_i32 {sROWB}, {sT0}, {ROWB}",
        f"s_and_b32 {sT0}, {sWAVE}, 1; s_mul_i32 {sB5}, {sT0}, 768; s_mul_i32 {sM05}, {sT0}, {4*PIX}; s_add_u32 {sM05}, {sM05}, {PATCH0 + 8*PROW}",
        f"s_mov_b32 {sPAR}, 0; s_mov_b32 {sSTEP}, -2; s_mov_b32 {sMLhi}, 0; s_mov_b32 {sMRlo}, 0",
        "s_mov_b32 s40, 0xffff0000; s_mov_b32 s41, 0; s_mov_b32 s42, 0; s_mov_b32 s43, 0xffff; s_mov_b32 s44, 0; s_mov_b32 s45, 0xffff0000",
        f"s_mov_b32 s46, 0x10001; s_mov_b32 s47, 0x10001; s_mov_b32 {sEPS}, {f32(9216.0*1e-5)}",
        f"v_mul_u32_u24 v1, 20, {ln}; v_lshrrev_b32 v1, 8, v1; v_sub_u32 v1, {ln}, v1; v_lshlrev_b32 v{vD0}, 4, v1")
    b.raw("s_waitcnt lgkmcnt(0)")
    srd(b, sX, 64, XBYTES, 192); srd(b, sDW, 66, 9*192); srd(b, sWQ, 68, 96*576); srd(b, sWO, 70, 96*192); srd(b, sOUT, 72, XBYTES)
    srd(b, sWS, 74, 1 << 28)
    d0 = D0
    b.x(f"v_lshrrev_b32 v1, 6, v0; v_lshl_add_u32 v1, v1, 4, {n}; v_lshlrev_b32 v1, 1, v1; v_mul_u32_u24 v5, 0x180, {g}; v_add_u32 v1, v1, v5")
    b.bld("buffer_load_ushort", d0, 1, 1, sDW, "0", 0); b.bld("buffer_load_ushort", d0+1, 1, 1, sDW, "0", 192)
    b.bld("buffer_load_ushort", d0+2, 1, 1, sDW, "0", 128); b.bld("buffer_load_ushort", d0+3, 1, 1, sDW, "0", 128+192)
    b.x("v_lshlrev_b32 v5, 1, v0")
    b.bld("buffer_load_ushort", d0+4, 1, 5, sDW, "0", 8*192)
    dma_issue(b); b.x(f"s_add_u32 {sSTEP}, {sSTEP}, 1")
    b.raw(f"s_cmp_eq_u32 {sWAVE}, 3"); b.raw("s_cbranch_scc1 L_proB")
    out += finalize(b.l)
    b = B()
    RAW = 100
    wraw_loads(b, RAW)
    wo_loads(b, 172, [2])
    dma_issue(b); b.x(f"s_add_u32 {sSTEP}, {sSTEP}, 1")
    b.raw("s_waitcnt vmcnt(34)")
    convw_build(b)
    DQ = [56, 64, 72, 40, 48, 92]
    wprep(b, RAW, 80, DQ)
    build_sel(b, 84, n)
    b.x(f"v_add_u32 v1, 16, {n}")
    build_sel(b, 88, "v1")
    wo_prep(b, 172, 1, [84, 88], DQ)
    common_consts(b)
    b.x(f"s_mul_i32 {sT2}, {sWAVE}, 3072; v_add_u32 v{vOwn}, {sT2}, v{vL16}")
    conv_consts(b, vCW, vCW2, vIdx, ONES, vDiag, sT2)
    b.x(f"s_lshl_b32 {sT0}, {sWAVE}, 11; v_add_u32 v{vY}, {sT0}, v{vL16}",
        f"s_lshl_b32 {sT0}, {sWAVE}, 4; s_min_u32 {sT1}, {sWAVE}, 1; s_add_u32 {sT0}, {sT0}, {sT1}; v_add_u32 v1, {sT0}, {n}")
    tok_rc(b)
    b.x(f"v_mul_u32_u24 v1, 9, v5; v_add_u32 v1, v1, v6; v_mul_u32_u24 v1, {PIX}, v1; v_lshl_add_u32 v1, {g}, 3, v1; v_add_u32 v{vConv}, {PATCH0}, v1",
        f"v_mul_u32_u24 v1, 511, v5; v_add_u32 v1, v1, v6; v_mul_u32_u24 v1, 0xc0, v1; v_lshl_add_u32 v1, {g}, 3, v1; v_add_u32 v{vOutA}, 0x80, v1")
    b.raw("s_waitcnt vmcnt(5)"); b.raw("s_barrier")
    out += finalize(b.l)
    b = B()
    p1(b, RA())
    b.x(f"v_xor_b32 v{vConv}, 0x8000, v{vConv}; v_xor_b32 v{vY}, 0x8000, v{vY}")
    l, _ = schedule(b.l, SP)
    out += finalize(l + [O_("s_waitcnt vmcnt(0) lgkmcnt(0)"), O_("s_barrier"), O_("s_branch L_xqkv")])
    b = B()
    b.raw("L_proB:")
    XB = 16
    b.x(f"v_mov_b32 v12, v{vD0}")
    xaddr(b, 13, 1, 5, sWX, sO)
    b.x(f"v_lshl_add_u32 v1, {g}, 3, v13; v_subrev_u32 v1, {ROWB}, v1")
    dma_issue(b); b.x(f"s_add_u32 {sSTEP}, {sSTEP}, 1")
    b.raw("s_waitcnt vmcnt(10)")
    for dr in range(3):
        b.x(f"s_mov_b32 {sT0}, {dr*ROWB}")
        for dc in range(3):
            tau = 3*dr + dc
            for t in range(6):
                b.bld("buffer_load_dwordx2", XB + 18*t + 2*tau, 2, 1, sX, sT0, dc*192 + 32*t)
    RAWB = 124
    convw_build(b)
    b.raw("s_waitcnt vmcnt(40)")
    wraw_loads(b, RAWB)
    b.x(f"v_lshlrev_b32 v14, 4, {ln}")
    conv_consts(b, 236, 237, 238, 232, 239, None)
    out += finalize(b.l + [O_("s_waitcnt vmcnt(18)")])
    b = B()
    def ywx(b, Y):
        b.x(f"v_cmp_gt_u32 {sCM}, {sNW}, {n}; v_lshl_add_u32 v15, {g}, 3, v13; v_cndmask_b32 v15, 2.0, v15, {sCM}")
        for t in range(6):
            b.bst("buffer_store_dwordx2", Y[t//2] + 2*(t & 1), 2, 15, sOUT, "0", 32*t)
    RX = dict(X=[196, 200, 204, 208, 212, 216], A=[(220, 224, 228), (240, 244, 230)], vCW=236, vCW2=237, vIdx=238, ONES=232,
              vOwn=14, vDiag=239, hbase=Y1, Y=[16, 20, 24], G=248, S1=252, HO=28, XT=[196, 200, 204, 208, 212, 216], ywrite=ywx)
    p1(b, RX, bsrc=lambda t: (XB + 18*t, XB + 18*t + 8, XB + 18*t + 16))
    l, _ = schedule(b.l, SP)
    out += finalize(l + [O_("s_waitcnt lgkmcnt(0)"), O_("s_barrier")])
    b = B()
    wo_loads(b, 76, [0, 1])
    b.raw("s_waitcnt vmcnt(12)")
    DQ = [28, 32, 36, 40, 44, 48]
    wprep(b, RAWB, 16, DQ)
    b.x(f"v_lshrrev_b32 v1, 2, {n}; v_lshl_add_u32 v1, v1, 2, {n}")
    build_sel(b, 16, "v1")
    b.x("v_add_u32 v1, 4, v1")
    build_sel(b, 20, "v1")
    wo_prep(b, 76, 2, [16, 20], DQ)
    for hh in range(2):
        b.x(f"v_lshrrev_b32 v1, 2, {n}; v_lshlrev_b32 v1, 1, v1; v_add_u32 v1, {hh}, v1; v_and_b32 v5, 3, v1; v_lshlrev_b32 v5, 3, v5",
            f"v_and_b32 v1, 4, v1; v_add_u32 v1, v1, v5; v_and_b32 v5, 3, {n}; v_add_u32 v1, v1, v5")
        build_sel(b, SEL + 4*hh, "v1")
    b.x(f"v_mov_b32 v{vD0}, v12")
    common_consts(b)
    for j in range(3):
        b.x(f"v_add_u32 v1, {16*j + (1 if j else 0)}, {n}")
        tok_rc(b)
        b.x(f"v_mul_u32_u24 v1, 511, v5; v_add_u32 v1, v1, v6; v_mul_u32_u24 v1, 0xc0, v1; v_lshl_add_u32 v{vOutB[j]}, {g}, 4, v1")
    b.x(f"v_mov_b32 v{vYB}, v{vL16}")
    b.raw("s_barrier")
    out += finalize(b.l)
    b = B()
    b.raw("L_xqkv:")
    for s in range(3):
        b.dsr("ds_read_b128", HB[0] + 4*s, 4, vL16, Y1 + s*1024)
    b.x(f"s_mul_i32 {sT0}, {sWAVE}, {TABH}; s_add_u32 {sT0}, {sT0}, {TAB}",
        f"v_lshlrev_b32 v1, 4, {g}; v_add_u32 v{vTab}, {sT0}, v1",
        f"v_lshlrev_b32 v1, 1, {n}; v_add_u32 v1, 0x80, v1; v_cmp_eq_u32 {sCM}, 0, {g}",
        f"v_cndmask_b32 v{vTabV}, 12, v1, {sCM}; v_add_u32 v{vTabV}, {sT0}, v{vTabV}")
    qkv_tile(b, HB[0], Pool(POOL), K[0], Q[0], VA_, VB_)
    b.x(f"v_mul_u32_u24 v7, 0xc0, {n}; v_add_u32 v7, v7, v{vTab}; v_mul_u32_u24 v8, 0x300, {g}; v_add3_u32 v8, v8, v1, {sT0}",
        f"s_mov_b32 {sCMlo}, 0x07ff07ff; s_mov_b32 {sCMhi}, 0x07ff07ff; s_mov_b64 exec, {sCM}")
    b.dsw("ds_write_b128", 7, K[0], 4, 0); b.dsw("ds_write_b128", 7, Q[0], 4, 64)
    b.x(f"s_mov_b32 {sCMlo}, -1; s_mov_b32 {sCMhi}, 0xffff; s_mov_b64 exec, {sCM}")
    for vb, off in ((VA_, 0), (VB_, 32)):
        b.dsw("ds_write_b16", 8, vb, 1, off); b.dsw("ds_write_b16_d16_hi", 8, vb, 1, off + 192); b.dsw("ds_write_b16", 8, vb+1, 1, off + 384)
    b.x(f"s_mov_b32 {sCMhi}, 0; s_mov_b64 exec, {sCM}")
    for vb, off in ((VA_, 0), (VB_, 32)):
        b.dsw("ds_write_b16_d16_hi", 8, vb+1, 1, off + 576)
    b.x("s_mov_b64 exec, -1")
    out += finalize(b.l)
    return out

def epilogue():
    out = []
    b = B()
    b.raw("L_last:")
    b.x(f"v_mbcnt_lo_u32_b32 {ln}, -1, 0; v_mbcnt_hi_u32_b32 {ln}, -1, {ln}; v_and_b32 {n}, 15, {ln}; v_lshrrev_b32 {g}, 4, {ln}",
        f"s_and_b32 {sT1}, {sNW}, 1; s_lshl_b32 {sPAR}, {sT1}, 15",
        f"v_add_u32 v2, {sPAR}, v{vOw1}; v_add_u32 v3, {sPAR}, v{vOw2}; v_add_u32 v4, {sPAR}, v{vL16}")
    xaddr(b, 5, 1, 6, sW0, sW1)
    b.x(f"v_cmp_gt_u32 {sCM}, {sNW}, {n}; v_cndmask_b32 v5, 2.0, v5, {sCM}; v_lshl_add_u32 v6, {g}, 3, v5; v_lshl_add_u32 v7, {g}, 4, v5")
    for t in range(6):
        b.bld("buffer_load_dwordx2", 116 + 2*t, 2, 6, sOUT, "0", 32*t, flags="sc1")
    onorm(b, OX, OX+4, 1, 0, check=False, base=Y0, aw=(2, 3))
    b.raw("s_waitcnt vmcnt(0) lgkmcnt(0)"); b.raw("s_barrier")
    b.raw(f"s_cmp_eq_u32 {sWAVE}, 3"); b.raw("s_cbranch_scc1 L_lastB")
    out += finalize(b.l, pre=[I("x", "mfma32", wr=V(OX, 8))])
    b = B()
    p3a(b)
    b.raw(f"s_cmp_lg_u32 {sWAVE}, 0"); b.raw("s_cbranch_scc1 L_end")
    for t in range(2):
        for i in range(2):
            b.x(f"v_lshlrev_b32 v{92 + 4*t + 2*i}, 16, v{124 + 2*t + i}; v_and_b32 v{92 + 4*t + 2*i + 1}, 0xffff0000, v{124 + 2*t + i}")
    b.x("v_add_u32 v6, 0x80, v6")
    p3a(b, obase=Y0, addr=4, x0=92, vout=6, soff="0")
    b.raw("s_branch L_end")
    out += finalize(b.l)
    b = B()
    b.raw("L_lastB:")
    p3b_tile(b, (92, 116, [132, 136, 56, 64], [72, 40]), 4, Y0, lambda b, YB: None, 7, "0")
    l, _ = schedule(t_b().l, SP)
    out += finalize(b.l + l)
    return out

def main_loop():
    out = []
    out.append(O_(".p2align 6")); out.append(O_("L_loop:"))
    l, t = schedule(p2_fast().l, SP)
    f = finalize(l + [O_(f"s_cmp_lg_u64 {sBAD}, 0"), O_("s_cbranch_scc1 L_slow")])
    print("P2", stats(f), t, file=sys.stderr)
    out += f
    out.append(O_("L_tail:"))
    f2 = finalize(p2_tail().l, pre=f[-24:])
    out += f2
    out += [O_(f"s_add_u32 {sSTEP}, {sSTEP}, 1"), O_(f"s_cmp_eq_u32 {sSTEP}, {sNW}"), O_("s_cbranch_scc1 L_last"),
            O_(f"s_cmp_eq_u32 {sWAVE}, 3"), O_("s_cbranch_scc1 L_tb")]
    out += [O_("s_waitcnt vmcnt(7) lgkmcnt(0)"), O_("s_barrier")]
    l, t = schedule(t_a().l, SP)
    f = finalize(l + [O_("s_waitcnt lgkmcnt(0)"), O_("s_barrier"), O_("s_branch L_loop")], pre=f2[-8:])
    print("TA", stats(f), t, file=sys.stderr)
    out += f
    out.append(O_("L_tb:"))
    out += [O_("s_waitcnt vmcnt(11) lgkmcnt(0)"), O_("s_barrier")]
    l, t = schedule(t_b().l, SP)
    f = finalize(l + [O_("s_waitcnt lgkmcnt(0)"), O_("s_barrier"), O_("s_branch L_loop")], pre=f2[-8:])
    print("TB", stats(f), t, file=sys.stderr)
    out += f
    out.append(O_("L_slow:"))
    out += finalize([O_("s_nop 7")] + p2_slow().l + [O_("s_nop 7"), O_("s_branch L_tail")])
    return out

def build(path):
    hdr = open("cdna_kernels/" + NAME + ".s.ref").read().split("\n")
    head = [l for l in hdr if l.startswith(";") and "@launch" not in l]
    body = prologue() + main_loop() + epilogue()
    src = "\n".join(head) + f"\n; @launch grid=(512,1,1) block=(256,1,1) lds={LDS_BYTES}\n"
    src += f""".amdgcn_target "amdgcn-amd-amdhsa--gfx950"
.text
.globl {NAME}_kernel
.p2align 8
.type {NAME}_kernel,@function
{NAME}_kernel:
{text(body)}
L_end:
    s_endpgm
.section .rodata,"a"
.p2align 6
.amdhsa_kernel {NAME}_kernel
  .amdhsa_next_free_vgpr 256
  .amdhsa_next_free_sgpr 96
  .amdhsa_accum_offset 256
  .amdhsa_group_segment_fixed_size 0
  .amdhsa_kernarg_size 56
  .amdhsa_user_sgpr_count 2
  .amdhsa_user_sgpr_kernarg_segment_ptr 1
  .amdhsa_system_sgpr_workgroup_id_x 1
.end_amdhsa_kernel
"""
    open(path, "w").write(src)

if __name__ == "__main__":
    build(sys.argv[1] if len(sys.argv) > 1 else "cdna_kernels/" + NAME + ".s")
```

```python
import re

def vr(i, n=1):
    return f"v{i}" if n == 1 else f"v[{i}:{i+n-1}]"
def sr(i, n=1):
    return f"s{i}" if n == 1 else f"s[{i}:{i+n-1}]"
def V(i, n=1):
    return [f"v{k}" for k in range(i, i+n)]
def S(i, n=1):
    return [f"s{k}" for k in range(i, i+n)]

ISSUE = dict(valu=4, trans=8, mfma32=8, mfma16=4, smfmac=12, dsr=4, dsw=4, vld=4, vst=4, dma=4, salu=4, other=4, perm=8)
MF = ("mfma32", "mfma16", "smfmac")
VA = ("valu", "trans", "perm")

class I:
    __slots__ = ("text", "kind", "rd", "wr", "c", "ab", "prio", "tag", "dpp", "wide")
    def __init__(self, text, kind, rd=(), wr=(), c=(), ab=(), dpp=(), wide=False, tag=None):
        self.text = text; self.kind = kind
        self.rd = list(rd); self.wr = list(wr)
        self.c = list(c)
        self.ab = list(ab)
        self.dpp = list(dpp)
        self.wide = wide
        self.prio = 0; self.tag = tag
    def __repr__(self): return self.text

class B:
    def __init__(self): self.l = []
    def add(self, i): self.l.append(i); return i
    def ext(self, other): self.l.extend(other.l if isinstance(other, B) else other)
    def mfma32(self, d, a, b, c=None):
        cs = "0" if c is None else vr(c, 4)
        cr = [] if c is None else V(c, 4)
        return self.add(I(f"v_mfma_f32_16x16x32_bf16 {vr(d,4)}, {vr(a,4)}, {vr(b,4)}, {cs}", "mfma32",
                          rd=V(a,4)+V(b,4)+cr, wr=V(d,4), c=cr, ab=V(a,4)+V(b,4)))
    def mfma16(self, d, a, b, c=None):
        cs = "0" if c is None else vr(c, 4)
        cr = [] if c is None else V(c, 4)
        return self.add(I(f"v_mfma_f32_16x16x16_bf16 {vr(d,4)}, {vr(a,2)}, {vr(b,2)}, {cs}", "mfma16",
                          rd=V(a,2)+V(b,2)+cr, wr=V(d,4), c=cr, ab=V(a,2)+V(b,2)))
    def smfmac(self, d, a, b, idx):
        return self.add(I(f"v_smfmac_f32_16x16x64_bf16 {vr(d,4)}, {vr(a,4)}, {vr(b,8)}, {vr(idx)}", "smfmac",
                          rd=V(a,4)+V(b,8)+V(idx)+V(d,4), wr=V(d,4), c=V(d,4), ab=V(a,4)+V(b,8)+V(idx)))
    def _regs(self, s):
        out = []
        for m in re.finditer(r"\b([vs])\[(\d+):(\d+)\]|\b([vs])(\d+)\b|\b(vcc|exec|m0|scc)\b", s):
            if m.group(1): out += [f"{m.group(1)}{k}" for k in range(int(m.group(2)), int(m.group(3))+1)]
            elif m.group(4): out.append(f"{m.group(4)}{m.group(5)}")
            else: out.append(m.group(6))
        return out
    def v(self, op, dst, *srcs, kind="valu", rmw=False, mods="", extra_rd=(), extra_wr=()):
        d = dst if isinstance(dst, str) else vr(dst)
        ss = [x if isinstance(x, str) else vr(x) for x in srcs]
        rd = []
        for x in ss: rd += self._regs(x)
        wr = self._regs(d)
        if rmw: rd += wr
        dpp = self._regs(ss[0]) if "dpp" in op else []
        return self.add(I(f"{op} {d}, {', '.join(ss)}{(' ' + mods) if mods else ''}", kind, rd=rd+list(extra_rd)+["exec"], wr=wr+list(extra_wr), dpp=dpp))
    def cvt(self, d, a, b): return self.v("v_cvt_pk_bf16_f32", d, a, b)
    def exp(self, d, a): return self.v("v_exp_f32", d, a, kind="trans")
    def swap(self, op, a, b):
        return self.add(I(f"{op} {vr(a)}, {vr(b)}", "perm", rd=V(a)+V(b)+["exec"], wr=V(a)+V(b), dpp=V(a)+V(b)))
    def s(self, op, dst, *srcs, scc=True, rd_scc=False, nodst=False):
        d = dst if isinstance(dst, str) else sr(dst)
        ss = [x if isinstance(x, str) else str(x) for x in srcs]
        rd = []
        for x in ss: rd += self._regs(x)
        if nodst: rd += self._regs(d); wr = []
        else: wr = self._regs(d)
        if scc: wr = wr + ["scc"]
        if rd_scc: rd = rd + ["scc"]
        return self.add(I(f"{op} {d}" + "".join(", " + x for x in ss), "salu", rd=rd, wr=wr))
    def dsr(self, op, d, n, addr, off=0, mem=(), rmw=False):
        return self.add(I(f"{op} {vr(d,n)}, {vr(addr)}" + (f" offset:{off}" if off else ""), "dsr",
                          rd=V(addr)+["exec"]+["L:"+m for m in mem]+(V(d,n) if rmw else []), wr=V(d,n)))
    def dsw(self, op, addr, d, n, off=0, mem=()):
        return self.add(I(f"{op} {vr(addr)}, {vr(d,n)}" + (f" offset:{off}" if off else ""), "dsw",
                          rd=V(addr)+V(d,n)+["exec"], wr=["L:"+m for m in mem]))
    def bld(self, op, d, n, voff, srd, soff="0", off=0, flags="", rmw=False):
        so = soff if isinstance(soff, str) else sr(soff)
        return self.add(I(f"{op} {vr(d,n)}, {vr(voff)}, {sr(srd,4)}, {so} offen" + (f" offset:{off}" if off else "") + (" "+flags if flags else ""), "vld",
                          rd=V(voff)+S(srd,4)+self._regs(so)+["exec","VM"]+(V(d,n) if rmw else []), wr=V(d,n)+["VM"]))
    def bst(self, op, d, n, voff, srd, soff="0", off=0, flags=""):
        so = soff if isinstance(soff, str) else sr(soff)
        return self.add(I(f"{op} {vr(d,n)}, {vr(voff)}, {sr(srd,4)}, {so} offen" + (f" offset:{off}" if off else "") + (" "+flags if flags else ""), "vst",
                          rd=V(voff)+V(d,n)+S(srd,4)+self._regs(so)+["exec","VM"], wr=["VM"], wide=(n >= 3)))
    def dma(self, voff, srd, soff, flags=""):
        so = soff if isinstance(soff, str) else sr(soff)
        return self.add(I(f"buffer_load_dwordx4 {vr(voff)}, {sr(srd,4)}, {so} offen" + (" "+flags if flags else "") + " lds", "dma",
                          rd=V(voff)+S(srd,4)+self._regs(so)+["exec","m0","VM"], wr=["VM"]))
    NOSCC = ("s_mov_b32", "s_mov_b64", "s_mul_i32", "s_cselect_b32", "s_cselect_b64", "s_movk_i32", "s_mul_hi_u32")
    RDSCC = ("s_cselect_b32", "s_cselect_b64", "s_addc_u32", "s_subb_u32")
    RMW = ("v_fmac_f32", "v_mov_b32_dpp")
    def x(self, *texts):
        for text in texts:
            for t in text.split(";"):
                t = t.strip()
                if not t: continue
                op, rest = t.split(None, 1)
                if op == "s_nop": self.add(I(t, "other")); continue
                ops = [o.strip() for o in rest.split(",")]
                if op.startswith("v_"):
                    kind = "trans" if any(op.startswith(p) for p in ("v_exp", "v_rcp", "v_rsq", "v_log", "v_sqrt")) else "valu"
                    wr = self._regs(ops[0]); rd = []
                    if op == "v_add_co_u32": wr += self._regs(ops[1]); ops = [ops[0]] + ops[2:]
                    for o in ops[1:]: rd += self._regs(o.split()[0])
                    if op in self.RMW: rd += wr
                    dpp = self._regs(ops[1].split()[0]) if "dpp" in op else []
                    self.add(I(t, kind, rd=rd + ["exec"], wr=wr, dpp=dpp))
                elif op.startswith("s_cmp"):
                    rd = []
                    for o in ops: rd += self._regs(o)
                    self.add(I(t, "salu", rd=rd, wr=["scc"]))
                else:
                    wr = self._regs(ops[0]); rd = []
                    for o in ops[1:]: rd += self._regs(o)
                    if op not in self.NOSCC: wr = wr + ["scc"]
                    if op in self.RDSCC: rd = rd + ["scc"]
                    self.add(I(t, "salu", rd=rd, wr=wr))
    def barrier(self, mem):
        t = ["L:" + m for m in mem]
        return self.add(I("s_barrier", "other", rd=t, wr=t))
    def raw(self, text, rd=(), wr=(), kind="other"):
        return self.add(I(text, kind, rd=rd, wr=wr))

def latency(p, c, reg, typ, P):
    if typ == "raw":
        if reg.startswith("L:") or reg == "VM": return 4
        if p.kind in MF:
            if c.kind in MF and reg in c.c and c.c == p.wr and reg not in c.ab:
                return 28 if ((p.kind == "mfma16") != (c.kind == "mfma16")) else 16
            return 36
        if p.kind == "dsr": return P.get("lds_lat", 110)
        if p.kind == "vld": return P.get("vm_lat", 600)
        if p.kind in VA:
            if c.kind in MF: return ISSUE[p.kind] + 8
            if p.kind == "trans": return 12
            if reg.startswith("s") or reg == "vcc": return 12
            if reg in c.dpp: return 12
            return ISSUE[p.kind]
        return 4
    if typ == "war":
        if p.kind in MF and reg in p.c and c.kind in VA: return 16
        return 4
    if p.kind in MF and c.kind not in MF: return 36
    if p.kind == "dsr": return P.get("lds_lat", 110)
    return 4

def schedule(ins, P=None):
    P = P or {}
    n = len(ins)
    scale = P.get("issue_scale", 1.0)
    preds = [dict() for _ in range(n)]
    lastw = {}; readers = {}
    for i, x in enumerate(ins):
        for r in x.rd:
            if r in lastw:
                p = lastw[r]; l = latency(ins[p], x, r, "raw", P)
                preds[i][p] = max(preds[i].get(p, 0), l)
        for r in x.wr:
            if r in lastw:
                p = lastw[r]; l = latency(ins[p], x, r, "waw", P)
                preds[i][p] = max(preds[i].get(p, 0), l)
            for p in readers.get(r, ()):
                if p != i:
                    l = latency(ins[p], x, r, "war", P)
                    preds[i][p] = max(preds[i].get(p, 0), l)
        for r in x.rd: readers.setdefault(r, []).append(i)
        for r in x.wr:
            lastw[r] = i; readers[r] = []
    succs = [dict() for _ in range(n)]
    for i in range(n):
        for p, l in preds[i].items(): succs[p][i] = l
    cp = [0]*n
    for i in range(n-1, -1, -1):
        cp[i] = max([l + cp[s] for s, l in succs[i].items()] + [ISSUE[ins[i].kind]]) + ins[i].prio
    npred = [len(p) for p in preds]
    ready_t = [(x.tag or 0) for x in ins]
    avail = [i for i in range(n) if npred[i] == 0]
    out = []
    t_any = 0; t_port = 0; t_ds = 0; pipe = 0; ldsfree = 0
    MEM = ("dsr", "dsw", "vld", "vst", "dma")
    psc = P.get("pipe_scale", 1.0)
    hist = []
    def nopcost(i):
        return owed_states(hist, ins[i])
    while avail:
        def st(i):
            k = ins[i].kind
            r = max(ready_t[i], t_any + 4*nopcost(i))
            if k in MF: r = max(r, pipe, t_port)
            elif k in VA: r = max(r, t_port)
            elif k in MEM:
                r = max(r, t_ds)
                if k in ("dsr", "dsw"): r = max(r, ldsfree)
            return r
        sts = {i: st(i) for i in avail}
        tmin = min(sts.values())
        def key(i):
            k = ins[i].kind
            bonus = 0
            if k in ("dsr", "dma", "vld"): bonus = P.get("mem_bonus", 200)
            if k in MF: bonus = P.get("mfma_bonus", 100)
            return (cp[i] + bonus - P.get("delay_w", 30) * (sts[i] - tmin), -i)
        i = max((i for i in avail if sts[i] <= tmin + P.get("slack", 8)), key=key)
        t = sts[i]
        avail.remove(i); out.append(ins[i])
        nc = nopcost(i)
        hist.extend([I("s_nop 0", "other")] * nc); hist.append(ins[i])
        k = ins[i].kind
        if k in MF:
            pipe = t + 16*psc; t_any = t + 4; t_port = t + ISSUE[k]*scale; t_ds = max(t_ds, t + ISSUE[k])
        elif k in VA:
            t_any = t + ISSUE[k]*scale; t_port = t_any; t_ds = t + ISSUE[k] + 8
        elif k == "dsw":
            nd = len([r for r in ins[i].rd if r[0] == "v"])
            t_any = t + 4*nd; t_ds = max(t_ds, t_any)
        else:
            t_any = t + 4
        if k in ("dsr", "dsw"): ldsfree = t + (P.get("lds_gap", 4) * (2 if "b128" in ins[i].text else 1))
        for s, l in succs[i].items():
            ready_t[s] = max(ready_t[s], t + l)
            npred[s] -= 1
            if npred[s] == 0: avail.append(s)
    assert len(out) == n
    return out, t_any

def ws_of(x):
    m = re.match(r"s_nop (\d+)", x.text)
    return int(m.group(1)) + 1 if m else 1

def need_ws(p, c):
    n = 0
    pw = set(p.wr); cr = set(c.rd); cw = set(c.wr)
    pwv = {r for r in pw if r[0] == "v" and r != "vcc"}
    if p.kind in MF:
        if c.kind in MF:
            if pwv & set(c.ab): n = max(n, 8)
            if pwv & set(c.c):
                if c.c != p.wr or ((p.kind == "mfma16") != (c.kind == "mfma16")): n = max(n, 6)
        else:
            if pwv & (cr | cw): n = max(n, 8)
        if c.kind in VA and set(p.c) & cw: n = max(n, 3)
    if p.kind in VA:
        if c.kind in MF and pwv & cr: n = max(n, 2)
        if p.kind == "trans" and c.kind in ("valu", "perm") and pwv & cr: n = max(n, 1)
        if pwv & set(c.dpp): n = max(n, 2)
        ps = {r for r in pw if r[0] == "s" or r == "vcc"}
        if ps & cr:
            if c.kind in VA: n = max(n, 4 if ("readlane" in c.text or "writelane" in c.text) else 2)
            if c.kind in ("vld", "vst", "dma"): n = max(n, 5)
        if ("readfirstlane" in c.text or "readlane" in c.text) and pwv & cr: n = max(n, 1)
        if "exec" in pw and c.kind in MF + VA: n = max(n, 5)
    if p.kind == "salu" and "m0" in pw and c.kind == "dma": n = max(n, 1)
    if p.kind == "vst" and p.wide and (set(p.rd) & cw) and c.kind != "vst":
        if {r for r in (set(p.rd) & cw) if r[0] == "v" and r != "vcc"}: n = max(n, 2)
    return n

def owed_states(hist, x):
    h = [p for p in hist[-12:] if not p.text.endswith(":") and not p.text.startswith(".")]
    need = 0
    for i, p in enumerate(h):
        n = need_ws(p, x)
        if n <= 0: continue
        t_any = 0; t_port = 0; t_pipe = 0; t = 0
        seq = h[i:] + [x]
        for k, y in enumerate(seq):
            if k == 0: t = 0
            else:
                t = t_any
                if y.kind in MF + VA: t = max(t, t_port)
                if y.kind in MF: t = max(t, t_pipe)
            if k == len(seq) - 1: break
            t_any = t + 4*ws_of(y)
            if y.kind in ("trans", "perm"): t_any = t + 8
            if y.kind in MF:
                t_port = t + ISSUE[y.kind]; t_pipe = t + 16
        req = 4*n + (8 if p.kind in ("trans", "perm") else 4)
        if t < req:
            need = max(need, -(-(req - t_any) // 4))
    return need

def finalize(ins, pre=(), q0=None, ret_q=False):
    out = []
    q = list(q0) if q0 else []
    vq = []
    hist = list(pre)
    for x in ins:
        if x.text.startswith("s_waitcnt"):
            m = re.search(r"lgkmcnt\((\d+)\)", x.text)
            if m:
                k = int(m.group(1))
                q = q[max(0, len(q)-k):] if k else []
            m = re.search(r"vmcnt\((\d+)\)", x.text)
            if m:
                k = int(m.group(1))
                vq = vq[max(0, len(vq)-k):] if k else []
        touched = set(x.rd) | set(x.wr)
        if x.text == "s_barrier": touched |= {"B" + r for r in touched}
        pos = -1
        for j, d in enumerate(vq):
            if d & touched: pos = j
        if pos >= 0:
            k = min(len(vq) - 1 - pos, 63)
            w = I(f"s_waitcnt vmcnt({k})", "other")
            out.append(w); hist.append(w)
            vq = vq[len(vq)-k:] if k else []
        pos = -1
        for j, d in enumerate(q):
            if d & touched: pos = j
        if pos >= 0:
            k = min(len(q) - 1 - pos, 15)
            w = I(f"s_waitcnt lgkmcnt({k})", "other")
            out.append(w); hist.append(w)
            q = q[len(q)-k:] if k else []
        need = owed_states(hist, x)
        if need > 0:
            w = I(f"s_nop {need-1}", "other")
            out.append(w); hist.append(w)
        out.append(x); hist.append(x)
        if x.kind == "dsr": q.append({r for r in x.wr} | {"B" + r for r in x.rd if r.startswith("L:")})
        elif x.kind == "dsw": q.append({"B" + r for r in x.wr if r.startswith("L:")})
        elif x.kind == "vld": vq.append({r for r in x.wr if r != "VM"})
        elif x.kind in ("vst", "dma"): vq.append(set())
    return (out, q) if ret_q else out

def text(ins):
    return "\n".join(("" if x.text.endswith(":") else "    ") + x.text for x in ins)

def stats(ins):
    from collections import Counter
    c = Counter(x.kind for x in ins)
    issue = sum(ISSUE[x.kind] for x in ins if x.kind in MF + VA)
    pipe = sum(16 for x in ins if x.kind in MF)
    nops = sum(ws_of(x) for x in ins if x.text.startswith("s_nop"))
    return dict(c), issue, pipe, nops
```

```python
import math, struct, sys
from fw import *

NAME = "standalone__window_attn_davit__vision"
ROWB = 511*192; XBYTES = 511*511*192
def f32(x): return "0x%08x" % struct.unpack("<I", struct.pack("<f", x))[0]
def opt(name, default):
    for a in sys.argv[1:]:
        if a.startswith("--" + name + "="): return type(default)(a.split("=")[1])
    return default

ZERO = 0; PXS = 32; PATCH0 = 544; PIX = 208; PROW = 9*PIX
H = PATCH0 + 81*PIX; Y0 = H + 9216; assert Y0 + 6144 <= 32768
PATCH1 = PATCH0 + 32768; O = H + 32768; Y1 = Y0 + 32768
CONVW = Y1 + 6144; CONVW2 = CONVW + 12*544; TAB = CONVW2 + 6*144; TABH = 11*192
LDS_END = TAB + 4*TABH; assert LDS_END <= 81920, LDS_END
LDS_BYTES = 81920
XST = 1744

sX, sOUT, sDW, sWQ, sWO = 4, 8, 12, 16, 20
sWAVE, sNW, sSTEP, sWX, sO, sWX2, sO2, sROWB, sM0W, sM05, sPAR = [f"s{i}" for i in range(24, 35)]
sT0, sT1, sT2, sT3, sT4 = [f"s{i}" for i in range(35, 40)]
def pair(i): return f"s[{i}:{i+1}]"
sG1, sG2, sG3, sMS, sML, sMR, sM5, sBAD, sCM = [pair(i) for i in (40, 42, 44, 46, 48, 50, 52, 58, 60)]
sMLlo, sMLhi, sMRlo, sMRhi, sCMlo, sCMhi = "s48", "s49", "s50", "s51", "s60", "s61"
sEPS, sB5, sW0, sW1, sT5, sT6 = "s54", "s55", "s56", "s57", "s62", "s63"
sWS = 76
vT = [0, 1, 2, 3]
vTab, vTabV, vACC, vST = 4, 5, 6, 7
K = [16, 20, 24]; Q = [28, 32, 36]; VA_, VB_ = 40, 48; P = [56, 64, 56]
vL16, vOw1, vOw2, vD0, vPXw = 31, 35, 39, 63, 71
vPXdA, vPXdB = 190, 12
OX = 80; VONES = 88
HB = [92, 104]; POOL = [116, 120, 124, 128, 132, 136]; POOL2 = [72, 76, 116, 120, 124]
SEL = 140; WO = 148; WQ = 196
X0K = 172; ONES = 180
vConv, vCv0, vCv1, vCW, vCW2, vDiag, vOutA, vIdx = range(8, 16)
vOwn, vY = 188, 189
vOutB = [8, 9, 10]; vYB = 11

A_SCALE = math.sqrt(24**-0.5 * math.log2(math.e))
BIG = 2.0**80

SP = dict(issue_scale=opt("isc", 1.0), pipe_scale=opt("psc", 1.0), lds_lat=opt("lat", 130), lds_gap=opt("gap", 4),
          mem_bonus=opt("mb", 200), mfma_bonus=opt("fb", 100), delay_w=opt("dw", 30), slack=opt("slack", 8))
O_ = lambda t: I(t, "other")
STAMP = "--stamp" in sys.argv
def stamp():
    if not STAMP: return []
    return [O_("s_memtime s[80:81]"), O_("s_waitcnt lgkmcnt(0)"), O_("s_mov_b32 m0, s82"), O_("s_nop 0"), O_(f"v_writelane_b32 v{vST}, s80, m0"), O_("s_add_u32 s82, s82, 1")]

def wq(F, s): return WQ + (F*3 + s)*4

class Pool:
    def __init__(self, regs): self.r = list(regs); self.i = 0
    def get(self):
        x = self.r[self.i % len(self.r)]; self.i += 1; return x

def qkv_tile(b, hb, pool, kd, qd, va, vb):
    def chain(F, swap, c0=None):
        d = pool.get()
        for s in range(3):
            a, bb = (hb + 4*s, wq(F, s)) if swap else (wq(F, s), hb + 4*s)
            b.mfma32(d, a, bb, (c0 if s == 0 else d))
        return d
    d = chain(1, False); b.cvt(kd, d, d+1); b.cvt(kd+1, d+2, d+3)
    d = chain(2, False); b.cvt(qd+2, d, d+1); b.cvt(kd+2, d+2, d+3)
    d = chain(0, False); b.cvt(qd, d, d+1); b.cvt(qd+1, d+2, d+3)
    d = chain(3, True); b.cvt(va, d, d+1); b.cvt(va+1, d+2, d+3)
    d = chain(4, True, VONES); b.cvt(vb, d, d+1); b.cvt(vb+1, d+2, d+3)

def onorm(b, oa, ob, t0, j, first=None, check=True, base=None, aw=(vOw1, vOw2)):
    base = O + j*3072 if base is None else base
    b.x(f"v_rcp_f32 v{t0}, v{ob+2}")
    if check:
        b.x(f"v_maximum3_f32 v{vACC}, v{ob+2}, v{t0}, v{first if first is not None else vACC}")
    b.x(f"v_mul_f32 v{t0}, {f32(1.0/A_SCALE)}, v{t0}")
    for r in (oa, oa+1, oa+2, oa+3, ob, ob+1):
        b.x(f"v_mul_f32 v{r}, v{r}, v{t0}")
    b.cvt(oa, oa, oa+1); b.cvt(oa+1, oa+2, oa+3); b.cvt(ob, ob, ob+1)
    b.dsw("ds_write_b64", aw[0], oa, 2, base, mem=[f"O{j}a"])
    b.dsw("ds_write_b32", aw[1], ob, 1, base + 2048, mem=[f"O{j}b"])
OTOK = [f"O{j}{x}" for j in range(3) for x in "ab"]

def adv(b, wx, o, t):
    b.x(f"s_add_u32 {wx}, {wx}, 1; s_cmp_eq_u32 {wx}, 73; s_cselect_b32 {t}, {6*ROWB}, 0; s_cselect_b32 {wx}, 0, {wx}",
        f"s_add_u32 {o}, {o}, {t}; s_add_u32 {o}, {o}, 1344")

def dma_issue(b):
    vDA, vDB, vD5 = vT[1], vT[2], vT[3]
    b.x(f"s_add_u32 {sT0}, {sSTEP}, 2; s_cmp_lt_u32 {sT0}, {sNW}; s_cselect_b32 {sT0}, {sO2}, 2.0",
        f"s_cmp_eq_u32 {sWX2}, 0; s_cselect_b32 {sMLlo}, 0xfff, 0",
        f"s_cmp_eq_u32 {sWX2}, 72; s_cselect_b32 {sMRhi}, 0xfff00000, 0",
        f"s_cmp_eq_u32 {sB5}, 0; s_cselect_b64 {sM5}, {sML}, {sMR}",
        f"v_cndmask_b32 v{vDA}, v{vD0}, 2.0, {sML}; v_cndmask_b32 v{vDB}, v{vD0}, 2.0, {sMR}; v_cndmask_b32 v{vD5}, v{vD0}, 2.0, {sM5}",
        f"s_add_u32 {sT1}, {sT0}, {sROWB}; s_add_u32 {sT2}, {sT1}, {ROWB}",
        f"s_cmp_lt_i32 {sT1}, 0; s_cselect_b32 {sT1}, 2.0, {sT1}",
        f"s_add_u32 {sT3}, {sM0W}, {sPAR}; s_mov_b32 m0, {sT3}")
    b.dma(vDA, sX, sT1)
    b.x(f"s_add_u32 {sT1}, {sT1}, 768; s_add_u32 m0, {sT3}, {4*PIX}")
    b.dma(vDB, sX, sT1)
    b.x(f"s_add_u32 m0, {sT3}, {PROW}")
    b.dma(vDA, sX, sT2)
    b.x(f"s_add_u32 {sT2}, {sT2}, 768; s_add_u32 m0, {sT3}, {PROW + 4*PIX}")
    b.dma(vDB, sX, sT2)
    b.x(f"s_add_u32 {sT0}, {sT0}, {7*ROWB}; s_add_u32 {sT0}, {sT0}, {sB5}; s_add_u32 m0, {sM05}, {sPAR}")
    b.dma(vD5, sX, sT0).prio = opt("dmaprio", 700)
    b.x(f"s_xor_b32 {sPAR}, {sPAR}, 0x8000")
    adv(b, sWX2, sO2, sT4)

def p2_fast(b, role):
    pool = Pool(POOL + [72, 76])
    hbs = [HB[0], HB[1], HB[0]]
    def hload(j):
        for s in range(3):
            b.dsr("ds_read_b128", hbs[j] + 4*s, 4, vL16, H + j*3072 + s*1024, mem=["H"])
    def stile(kt, j):
        d = pool.get()
        b.mfma32(d, K[kt], Q[j])
        for i in range(4): b.exp(d+i, d+i)
        b.cvt(P[j] + 2*kt, d, d+1); b.cvt(P[j] + 2*kt + 1, d+2, d+3)
    hload(0); hload(1)
    b.dsr("ds_read_u16", VA_+6, 1, vTabV, 0)
    b.dsr("ds_read_u16", VB_+6, 1, vTabV, 32)
    dma_issue(b)
    qkv_tile(b, hbs[0], pool, K[0], Q[0], VA_, VB_)
    hload(2)
    stile(0, 0)
    qkv_tile(b, hbs[1], pool, K[1], Q[1], VA_+2, VB_+2)
    kx, qx = HB[1], HB[1] + 4
    b.dsr("ds_read_b128", kx, 4, vTab, 0)
    b.dsr("ds_read_b128", qx, 4, vTab, 64)
    stile(1, 0); stile(0, 1); stile(1, 1)
    qkv_tile(b, hbs[2], pool, K[2], Q[2], VA_+4, VB_+4)
    pool = Pool(POOL2 if role == "A" else POOL2 + [128, 132, 136, 92, 96, 100, 112])
    def xkey(j):
        d = pool.get()
        b.mfma32(d, kx, Q[j])
        b.exp(d, d)
        b.cvt(P[j] + 6, d, d)
    def pv(j):
        oa, ob = pool.get(), pool.get()
        b.mfma32(oa, VA_, P[j]); b.mfma32(ob, VB_, P[j])
        b.mfma32(oa, VA_+4, P[j]+4, oa); b.mfma32(ob, VB_+4, P[j]+4, ob)
        return oa, ob
    xkey(0); stile(2, 0)
    t = vT[0]
    for kt in range(4):
        d = pool.get()
        b.mfma32(d, qx, K[kt] if kt < 3 else kx)
        if kt == 0: d0 = d
        else: b.x(f"v_cndmask_b32 v{t}, v{d0 if kt == 1 else t}, v{d}, {[sG1, sG2, sG3][kt-1]}")
    b.exp(t, t)
    b.x(f"v_cmp_le_f32 vcc, {f32(1.0/BIG)}, v{t}")
    b.cvt(vT[1], t, t)
    b.dsw("ds_write_b16", vPXw, vT[1], 1, 0, mem=["PX"])
    b.x(f"s_cmp_eq_u64 vcc, 0; s_cselect_b64 {sBAD}, -1, 0")
    o = pv(0)
    xkey(1); stile(2, 1)
    onorm(b, o[0], o[1], vT[2], 0, first=t)
    stile(0, 2)
    o = pv(1)
    xkey(2); stile(1, 2); stile(2, 2)
    onorm(b, o[0], o[1], vT[3], 1)
    o = pv(2)
    onorm(b, o[0], o[1], vT[2], 2)
    b.x(f"v_cmp_nge_f32 vcc, {f32(BIG)}, v{vACC}; s_or_b64 {sBAD}, {sBAD}, vcc")

def p2_tail(b, vpxd, px=72):
    a = vT[1]
    b.x(f"v_cndmask_b32 v{a}, 0, v{vpxd}, {sMS}")
    b.dsr("ds_read_b128", px, 4, a, 0, mem=["PX"])
    b.dsr("ds_read_b128", px+4, 4, a, 16, mem=["PX"])
    b.x(f"v_add_u32 v{vTab}, 0xc0, v{vTab}; v_add_u32 v{vTabV}, 0xc0, v{vTabV}; s_lshl_b64 {sMS}, {sMS}, 1")
    b.mfma32(OX, VA_, px, OX); b.mfma32(OX+4, VB_, px, OX+4)
    b.mfma32(OX, VA_+4, px+4, OX); b.mfma32(OX+4, VB_+4, px+4, OX+4)

def xgroup_max(b, m, t):
    b.x(f"v_mov_b32 v{t}, v{m}"); b.swap("v_permlane32_swap_b32", m, t); b.x(f"v_max_f32 v{m}, v{m}, v{t}")
    b.x(f"v_mov_b32 v{t}, v{m}"); b.swap("v_permlane16_swap_b32", m, t); b.x(f"v_max_f32 v{m}, v{m}, v{t}")

def p2_slow():
    b = B()
    kx, qx = HB[1], HB[1] + 4
    S_ = POOL2[:4]; m, t = vT[2], vT[3]
    for j in range(3):
        for kt in range(4):
            b.mfma32(S_[kt], K[kt] if kt < 3 else kx, Q[j])
        regs = [S_[kt] + i for kt in range(3) for i in range(4)] + [S_[3]]
        b.x(f"v_mov_b32 v{m}, v{regs[0]}")
        for r in regs[1:]: b.x(f"v_max_f32 v{m}, v{m}, v{r}")
        xgroup_max(b, m, t)
        for r in regs:
            b.x(f"v_sub_f32 v{r}, v{r}, v{m}"); b.exp(r, r)
        for kt in range(3):
            b.cvt(P[j] + 2*kt, S_[kt], S_[kt]+1); b.cvt(P[j] + 2*kt + 1, S_[kt]+2, S_[kt]+3)
        b.cvt(P[j] + 6, S_[3], S_[3])
        oa, ob = POOL2[4], POOL2[0]
        b.mfma32(oa, VA_, P[j]); b.mfma32(ob, VB_, P[j])
        b.mfma32(oa, VA_+4, P[j]+4, oa); b.mfma32(ob, VB_+4, P[j]+4, ob)
        onorm(b, oa, ob, m, j, check=False)
    x = vT[0]
    for kt in range(4):
        b.mfma32(S_[kt], qx, K[kt] if kt < 3 else kx)
    b.x(f"v_cndmask_b32 v{x}, v{S_[0]}, v{S_[1]}, {sG1}; v_cndmask_b32 v{x}, v{x}, v{S_[2]}, {sG2}; v_cndmask_b32 v{x}, v{x}, v{S_[3]}, {sG3}")
    b.x(f"v_mov_b32 v{m}, v{x}")
    xgroup_max(b, m, t)
    for sh in (1, 2, 4, 8):
        b.x(f"v_mov_b32_dpp v{t}, v{m} row_ror:{sh} row_mask:0xf bank_mask:0xf; v_max_f32 v{m}, v{m}, v{t}")
    b.x(f"v_sub_f32 v{x}, v{x}, v{m}"); b.exp(x, x)
    b.cvt(vT[1], x, x)
    b.dsw("ds_write_b16", vPXw, vT[1], 1, 0, mem=["PX"])
    return b

XA = [140, 144, 184, 192, X0K, X0K+4]
YA = [116, 120, 124]
def conv(b, ts, U, PR):
    X = XA
    for i, t in enumerate(ts):
        a2, b2 = PR[i % len(PR)]
        b.dsr("ds_read_b64", a2, 2, vCW2, t*144)
        b.dsr("ds_read_b64", b2, 2, vConv, 32*t, mem=["PATCH"])
        b.mfma16(X[t], a2, b2)
        for u in range(2):
            bo, aq = U[(2*i + u) % len(U)]
            b.dsr("ds_read_b128", aq, 4, vCW, (2*t + u)*544)
            b.dsr("ds_read_b128", bo, 4, (vCv0, vCv1)[u], 32*t, mem=["PATCH"])
            b.dsr("ds_read_b128", bo+4, 4, (vCv0, vCv1)[u], 32*t + 16, mem=["PATCH"])
            b.smfmac(X[t], aq, bo, vIdx)
def lnorm(b):
    X = XA; Y = YA; G, S1 = 40, 48
    for t in range(6):
        y = Y[t//2] + 2*(t & 1)
        b.cvt(y, X[t], X[t]+1); b.cvt(y + 1, X[t]+2, X[t]+3)
        if t < 4:
            b.dsw("ds_write_b64", vY, y, 2, Y0 + (t//2)*1024 + (t & 1)*512, mem=[f"Y{t}"])
    for s in range(3):
        b.mfma32(G, Y[s], Y[s], None if s == 0 else G)
    for s in range(3):
        b.mfma32(S1, ONES, Y[s], None if s == 0 else S1)
    b.dsw("ds_write_b128", vOwn, G, 4, H, mem=["H0"])
    s2, u, ra = G, S1+1, S1+2
    b.dsr("ds_read_b32", s2, 1, vDiag, H, mem=["H0"])
    b.x(f"v_fma_f32 v{u}, -v{S1}, v{S1}, {sEPS}",
        f"v_fmamk_f32 v{u}, v{s2}, {f32(96.0)}, v{u}",
        f"v_max_f32 v{u}, {f32(9216.0*1e-5)}, v{u}",
        f"v_rsq_f32 v{u}, v{u}",
        f"v_mul_f32 v{ra}, {f32(-A_SCALE)}, v{u}",
        f"v_mul_f32 v{u}, {f32(96.0*A_SCALE)}, v{u}",
        f"v_mul_f32 v{ra}, v{ra}, v{S1}")
    HO = 92; XT = X[:4] + [104, 108]
    for t in range(6):
        for i in range(4):
            b.x(f"v_fma_f32 v{XT[t]+i}, v{X[t]+i}, v{u}, v{ra}")
        b.cvt(HO + 2*t, XT[t], XT[t]+1); b.cvt(HO + 2*t + 1, XT[t]+2, XT[t]+3)
        if t & 1:
            b.dsw("ds_write_b128", vOwn, HO + 2*(t-1), 4, H + (t//2)*1024, mem=[f"H{t//2}"])
    b.x(f"v_xor_b32 v{vConv}, 0x8000, v{vConv}; v_xor_b32 v{vCv0}, 0x8000, v{vCv0}; v_xor_b32 v{vCv1}, 0x8000, v{vCv1}; v_xor_b32 v{vY}, 0x8000, v{vY}")
def p1(b):
    conv(b, range(6), [(92, 100), (128, 136), (104, 112), (72, 56)], [(60, 68), (44, 52)])
    lnorm(b)

def p3a(b, obase=O, addr=vOwn, x0=X0K, vout=vOutA, soff=sO, OB=(56, 64, 72), D=(76, 112)):
    for s in range(3):
        b.dsr("ds_read_b128", OB[s], 4, addr, obase + s*1024, mem=["O0a"])
    for s in range(3):
        for t in range(2):
            b.mfma32(D[t], WO + (t*3 + s)*4, OB[s], x0 + 4*t if s == 0 else D[t])
    for t, d in ((0, 28), (1, 32)):
        b.cvt(d, D[t], D[t] + 1); b.cvt(d+1, D[t] + 2, D[t] + 3)
        b.bst("buffer_store_dwordx2", d, 2, vout, sOUT, soff, 32*t)

B1TOK = OTOK + ["H", "H0", "H1", "H2"]
NCV = opt("ncv", 4)
def r1_a():
    b = B()
    p2_fast(b, "A")
    k = len(b.l)
    conv(b, range(NCV), [(92, 100), (128, 136)], [(112, 114)])
    for x in b.l[k:]: x.prio = 0
    b.l[-1].prio = opt("cvprio", 0)
    return b
def t_a():
    b = B()
    p2_tail(b, vPXdA)
    bar = b.barrier(B1TOK); bar.prio = opt("b1prio", 300); bar.tag = opt("b1t", 80)
    p3a(b)
    conv(b, range(NCV, 6), [(92, 100), (128, 136), (104, 16), (92, 100)] if False else [(92, 100), (128, 136), (104, 124)], [(60, 68), (16, 20)])
    lnorm(b)
    adv(b, sWX, sO, sT4)
    return b

def p3b_tile(b, regs, oaddr, obase, yload, vout, soff):
    OB, YB, D = regs
    for s in range(3):
        b.dsr("ds_read_b128", OB + 4*s, 4, oaddr, obase + s*1024, mem=["O0a"])
    yload(b, YB)
    for so in range(2):
        for hh in range(2):
            d = D[so*2 + hh]
            for i in range(2):
                y = YB + 4*so + 2*hh + i
                b.x(f"v_lshlrev_b32 v{d + 2*i}, 16, v{y}; v_and_b32 v{d + 2*i + 1}, 0xffff0000, v{y}")
            for s in range(3):
                b.mfma32(d, WO + ((so*2 + hh)*3 + s)*4, OB + 4*s, d)
            b.cvt(YB + 4*so + 2*hh, d, d+1); b.cvt(YB + 4*so + 2*hh + 1, d+2, d+3)
        b.bst("buffer_store_dwordx4", YB + 4*so, 4, vout, sOUT, soff, 64*so)

def t_b(tail=True):
    b = B()
    if tail:
        p2_tail(b, vPXdB)
        bar = b.barrier(B1TOK); bar.prio = opt("b1prio", 300); bar.tag = opt("b1t", 80); bar.tag = opt("b1t", 80)
    sets = [(92, 140, [132, 136, 56, 64]), (104, 116, [124, 128, 72, 76]), (92, 140, [132, 136, 56, 64])]
    for j in range(3):
        def yl(b, YB, j=j):
            for so in range(2):
                b.dsr("ds_read_b128", YB + 4*so, 4, vYB, Y0 + j*2048 + so*1024, mem=["YR"])
        p3b_tile(b, sets[j], vL16, O + j*3072, yl, vOutB[j], sO)
    b.x(f"v_xor_b32 v{vYB}, 0x8000, v{vYB}")
    adv(b, sWX, sO, sT4)
    return b

n, g, ln, t0, t1, t2, t3, t4 = [f"v{i}" for i in range(OX, OX+8)]
T0, T1, T2 = OX+3, OX+4, OX+5
def srd(b, s, ptr, size, bias=0):
    if bias: b.x(f"s_sub_u32 s{s}, s{ptr}, {bias}; s_subb_u32 s{s+1}, s{ptr+1}, 0")
    else: b.x(f"s_mov_b32 s{s}, s{ptr}; s_mov_b32 s{s+1}, s{ptr+1}")
    b.x(f"s_mov_b32 s{s+2}, {size + bias}; s_mov_b32 s{s+3}, 0x20000")

def build_sel(b, dst, T):
    b.x(f"v_sub_u32 {t1}, {T}, {t3}; v_and_b32 {t2}, 1, {t1}; v_lshlrev_b32 {t2}, 4, {t2}; v_lshlrev_b32 {t2}, {t2}, {t4}; v_lshrrev_b32 {t1}, 1, {t1}")
    ms = [sCM, "vcc", sBAD, sM5]
    for r in range(4): b.x(f"v_cmp_eq_u32_e64 {ms[r]}, {r}, {t1}")
    for r in range(4): b.x(f"v_cndmask_b32_e64 v{dst+r}, 0, {t2}, {ms[r]}")

def tok_rc(b, base):
    b.x(f"v_add_u32 {t0}, 4, {n}; v_bfe_u32 {t1}, {t0}, 3, 1; v_and_b32 {t0}, 7, {t0}; v_lshl_add_u32 {t0}, {t0}, 1, {t1}; v_add_u32 {t0}, {base}, {t0}",
        f"v_mul_u32_u24 {t1}, 37, {t0}; v_lshrrev_b32 {t1}, 8, {t1}; v_mul_u32_u24 {t2}, 7, {t1}; v_sub_u32 {t2}, {t0}, {t2}; v_sub_u32 {t1}, 6, {t1}")

def wraw(w, kb):
    s = kb // 2; i = (kb & 1)*3 + w
    return wq(i, s) if i < 5 else K[s]
def wprep(b):
    sel = Q
    pool = Pool(list(range(92, 140, 4)))
    for s in range(3):
        ds = {}
        for kb in (2*s, 2*s+1):
            rq, rk, rv = wraw(0, kb), wraw(1, kb), wraw(2, kb)
            for F, ops in ((0, [(rq, sel[0])]), (1, [(rk, sel[0])]), (2, [(rq, sel[1]), (rk, sel[2])]), (3, [(rv, sel[0])]), (4, [(rv, sel[1])])):
                d = pool.get(); ds[(F, kb)] = d
                for i, (a, s_) in enumerate(ops):
                    b.mfma32(d, a, s_, None if i == 0 else d)
        for (F, kb), d in ds.items():
            o = wq(F, s) + 2*(kb & 1)
            b.cvt(o, d, d+1); b.cvt(o+1, d+2, d+3)

def wo_addr(b, a0, a1):
    b.x(f"v_mul_u32_u24 v{a0}, 0xc0, {n}; v_lshl_add_u32 v{a0}, {g}, 4, v{a0}",
        f"v_bfe_u32 v{a1}, {n}, 1, 1; v_mul_u32_u24 v{a1}, 24, v{a1}; v_lshrrev_b32 {t2}, 2, {n}; v_lshl_add_u32 v{a1}, {t2}, 1, v{a1}",
        f"v_and_b32 {t2}, 1, {n}; v_add3_u32 v{a1}, v{a1}, {t2}, 16; v_mul_u32_u24 v{a1}, 0xc0, v{a1}; v_lshl_add_u32 v{a1}, {g}, 4, v{a1}")
def wo_loads(b, ci, a0, a1, colsg):
    for rb in range(6):
        sp, jh = rb // 2, rb & 1
        rowoff = (24*(2*sp + jh) if sp < 2 else 48*jh) * 192
        b.x(f"s_add_u32 {sT0}, {colsg}, {rowoff}")
        b.bld("buffer_load_dwordx4", WO + ((ci*2 + jh)*3 + sp)*4, 4, a0 if sp < 2 else a1, sWO, sT0)
def wo_prep(b, ci, sels, pool):
    for sp in range(3):
        ds = {}
        for jh in range(2):
            for v_ in range(2):
                d = pool.get(); ds[(jh, v_)] = d
                b.mfma32(d, WO + ((ci*2 + jh)*3 + sp)*4, sels[v_])
        for (jh, v_), d in ds.items():
            o = WO + ((ci*2 + v_)*3 + sp)*4 + 2*jh
            b.cvt(o, d, d+1); b.cvt(o+1, d+2, d+3)

def xaddr(b, dst, a, c, wx, o):
    b.x(f"s_sub_u32 {sT0}, {sNW}, 1; v_min_u32 {a}, {sT0}, {n}; v_add_u32 {c}, {wx}, {a}",
        f"v_cmp_lt_u32 vcc, 0x48, {c}; v_mov_b32 {c}, {6*ROWB}; v_cndmask_b32_e64 {c}, 0, {c}, vcc",
        f"v_mul_u32_u24 {a}, {1344}, {a}; v_add3_u32 {dst}, {a}, {c}, {o}; v_add_u32 {dst}, {4*ROWB + 2*192}, {dst}",
        f"v_cmp_gt_u32 vcc, {sNW}, {n}; v_cndmask_b32_e64 {dst}, 2.0, {dst}, vcc")

D0 = 96
def cw_id(b, dst):
    b.x(f"v_lshrrev_b32 {dst}, 2, {n}; v_xor_b32 {dst}, {dst}, {g}; v_and_b32 {dst}, 1, {dst}; v_mul_u32_u24 {dst}, 9, {dst}",
        f"v_and_b32 {t2}, 7, {n}; v_add_u32 {dst}, {dst}, {t2}")
def convw_build(b):
    q = 92; d0 = D0
    cw_id(b, t0)
    b.x(f"v_lshrrev_b32 {t1}, 3, {n}; v_mul_u32_u24 {t1}, 17, {t1}; v_add_u32 {t0}, {t0}, {t1}",
        f"v_lshrrev_b32 {t1}, 1, {g}; v_mul_u32_u24 {t1}, 34, {t1}; v_add_u32 {t0}, {t0}, {t1}; v_lshlrev_b32 {t0}, 4, {t0}",
        f"s_mul_i32 {sT0}, {sWAVE}, 1088; s_add_u32 {sT0}, {sT0}, {CONVW}; v_add_u32 {t0}, {sT0}, {t0}",
        f"v_cndmask_b32_e64 {t2}, 0, 1.0, {sG1}; v_or_b32 v{d0}, v{d0}, {t2}; v_or_b32 v{d0+2}, v{d0+2}, {t2}",
        f"v_and_b32 {t1}, 4, {n}; v_cmp_eq_u32_e64 {sCM}, 0, {t1}")
    for rnd in range(2):
        a = d0 + 2*rnd
        b.x(f"v_cndmask_b32_e64 v{q}, 0, v{a}, {sCM}; v_cndmask_b32_e64 v{q+2}, 0, v{a+1}, {sCM}",
            f"v_cndmask_b32_e64 v{q+1}, v{a}, 0, {sCM}; v_cndmask_b32_e64 v{q+3}, v{a+1}, 0, {sCM}")
        if rnd == 1:
            b.x(f"s_cmp_lt_u32 {sWAVE}, 2; s_cselect_b64 exec, -1, 0")
        b.dsw("ds_write_b128", T0, q, 4, rnd*8*544, mem=["CW"])
    b.x("s_mov_b64 exec, -1",
        f"v_and_b32 {t1}, 1, {n}; v_lshlrev_b32 {t1}, 4, {t1}; v_lshlrev_b32 v{d0+4}, {t1}, v{d0+4}",
        f"v_and_b32 {t1}, 2, {n}; v_cmp_eq_u32_e64 {sCM}, 0, {t1}",
        f"v_cndmask_b32_e64 v{q}, 0, v{d0+4}, {sCM}; v_cndmask_b32_e64 v{q+1}, v{d0+4}, 0, {sCM}",
        f"v_lshrrev_b32 {t0}, 4, v0; v_mul_u32_u24 {t0}, 0x90, {t0}; v_lshl_add_u32 {t0}, {n}, 3, {t0}; v_add_u32 {t0}, {CONVW2}, {t0}",
        f"v_cmp_gt_u32 vcc, 0x60, v0; s_mov_b64 exec, vcc")
    b.dsw("ds_write_b64", T0, q, 2, 0, mem=["CW"])
    b.x("s_mov_b64 exec, -1")
def zero_chunks(b):
    q = 92
    for i in range(4): b.x(f"v_mov_b32 v{q+i}, 0")
    b.x(f"v_mul_u32_u24 {t0}, 0x110, v0; v_add_u32 {t0}, {CONVW + 128}, {t0}; v_lshlrev_b32 {t1}, 4, v0",
        f"v_mul_u32_u24 {t2}, 0x90, v0; v_add_u32 {t2}, {CONVW2 + 128}, {t2}",
        f"v_cmp_gt_u32_e64 {sCM}, 24, v0; s_mov_b64 exec, {sCM}")
    b.dsw("ds_write_b128", T0, q, 4, 0, mem=["CW"])
    b.x(f"v_cmp_gt_u32_e64 {sCM}, 6, v0; s_mov_b64 exec, {sCM}")
    b.dsw("ds_write_b64", T2, q, 2, 0, mem=["CW"])
    b.x(f"v_cmp_gt_u32_e64 {sCM}, 2, v0; s_mov_b64 exec, {sCM}")
    b.dsw("ds_write_b128", T1, q, 4, ZERO, mem=["CW"])
    b.x("s_mov_b64 exec, -1")

XR = 148
WST = H
assert WST + 4*14*1024 <= LDS_BYTES
def prologue():
    out = []
    b = B()
    b.raw("s_cmp_ge_u32 s2, 512"); b.raw("s_cbranch_scc1 L_end2")
    if STAMP:
        b.raw("s_mov_b32 s82, 0"); b.raw("s_memrealtime s[84:85]"); b.raw("s_waitcnt lgkmcnt(0)"); b.raw(f"v_writelane_b32 v{vST}, s84, 62")
    b.ext(stamp())
    b.raw("s_load_dwordx8 s[64:71], s[0:1], 0"); b.raw("s_load_dwordx2 s[72:73], s[0:1], 32")
    if STAMP: b.raw("s_load_dwordx2 s[74:75], s[0:1], 48")
    if opt("ctouch", 64):
        b.raw(f"s_cmp_ge_u32 s2, {opt('ctouch', 64)}"); b.raw("s_cbranch_scc1 L_notouch")
        b.raw("s_getpc_b64 s[86:87]", wr=["s86", "s87"])
        b.raw("L_pc:")
        b.raw("s_mov_b32 s88, (L_end2-L_pc)>>7", wr=["s88"])
        b.x(f"v_lshlrev_b32 v2, 7, v0; v_mov_b32 v3, s87; v_add_co_u32 v2, vcc, s86, v2")
        b.add(I("v_addc_co_u32 v3, vcc, 0, v3, vcc", "valu", rd=["v3", "vcc"], wr=["v3", "vcc"]))
        b.x(f"v_cmp_gt_u32 vcc, s88, v0; s_mov_b64 exec, vcc")
        b.raw("s_cbranch_execz L_notouch")
        b.add(I("global_load_dword v101, v[2:3], off", "vld", rd=["v2", "v3"], wr=["v101"]))
        b.raw("L_notouch:")
        b.x("s_mov_b64 exec, -1")
    b.x(f"v_lshrrev_b32 {t0}, 6, v0; v_and_b32 {ln}, 63, v0; v_readfirstlane_b32 {sWAVE}, {t0}; v_and_b32 {n}, 15, v0; v_bfe_u32 {g}, v0, 4, 2",
        f"v_lshlrev_b32 {t4}, 4, {ln}",
        f"s_and_b32 {sT0}, s2, 7; s_lshr_b32 {sT1}, s2, 3; s_cmp_eq_u32 {sT0}, 0; s_cselect_b32 {sT2}, 27, 26; s_cselect_b32 {sT3}, 0, 1",
        f"s_mul_i32 {sT0}, {sT0}, 666; s_add_u32 {sT0}, {sT0}, {sT3}; s_mul_i32 {sT3}, {sT1}, 10; s_add_u32 {sT0}, {sT0}, {sT3}",
        f"s_min_u32 {sT3}, {sT1}, {sT2}; s_add_u32 {sW0}, {sT0}, {sT3}; s_cmp_lt_u32 {sT1}, {sT2}; s_cselect_b32 {sNW}, 11, 10",
        f"s_mul_i32 {sT0}, {sW0}, 57457; s_lshr_b32 {sT0}, {sT0}, 22; s_mul_i32 {sT1}, {sT0}, 73; s_sub_u32 {sWX}, {sW0}, {sT1}",
        f"s_mul_i32 {sO}, {sT0}, {7*ROWB}; s_mul_i32 {sT1}, {sWX}, 1344; s_add_u32 {sO}, {sO}, {sT1}",
        f"s_mov_b32 {sWX2}, {sWX}; s_mov_b32 {sO2}, {sO}; s_mov_b32 {sW0}, {sWX}; s_mov_b32 {sW1}, {sO}",
        f"s_lshl_b32 {sT0}, {sWAVE}, 1; s_mul_i32 {sM0W}, {sT0}, {PROW}; s_add_u32 {sM0W}, {sM0W}, {PATCH0}",
        f"s_sub_u32 {sT0}, {sT0}, 1; s_mul_i32 {sROWB}, {sT0}, {ROWB}",
        f"s_and_b32 {sT0}, {sWAVE}, 1; s_mul_i32 {sB5}, {sT0}, 768; s_mul_i32 {sM05}, {sT0}, {4*PIX}; s_add_u32 {sM05}, {sM05}, {PATCH0 + 8*PROW}",
        f"s_mov_b32 {sPAR}, 0; s_mov_b32 {sSTEP}, -2; s_mov_b32 {sMLhi}, 0; s_mov_b32 {sMRlo}, 0",
        f"v_mul_u32_u24 {t1}, 20, {ln}; v_lshrrev_b32 {t1}, 8, {t1}; v_sub_u32 {t1}, {ln}, {t1}; v_lshlrev_b32 v{vD0}, 4, {t1}",
        f"v_lshl_add_u32 {t0}, {t0}, 4, {n}; v_lshlrev_b32 {t0}, 1, {t0}; v_and_b32 {t1}, 1, {g}; v_lshlrev_b32 {t1}, 2, {t1}; v_lshrrev_b32 {t2}, 1, {g}",
        f"v_add_u32 {t1}, {t1}, {t2}; v_mul_u32_u24 {t1}, 0xc0, {t1}; v_add_u32 {t0}, {t0}, {t1}; v_lshlrev_b32 {t1}, 1, v0",
        f"s_mul_i32 {sT6}, {sT0}, 54; v_add_u32 {t2}, {sT6}, {ln}; v_mul_u32_u24 v6, 57, {t2}; v_lshrrev_b32 v6, 11, v6",
        f"v_mul_u32_u24 v6, {ROWB - 576}, v6; v_lshl_add_u32 v6, {t2}, 4, v6; v_cmp_gt_u32 vcc, 54, {ln}; v_cndmask_b32_e64 v6, 2.0, v6, vcc",
        f"s_mul_i32 {sT5}, {sWAVE}, {14*1024}; s_add_u32 m0, {sT5}, {WST}")
    b.raw("s_waitcnt lgkmcnt(0)")
    srd(b, sWQ, 68, 96*576)
    for i in range(14):
        if i and i % 4 == 0:
            b.x(f"s_add_u32 {sT5}, {sT5}, 4096; s_add_u32 m0, {sT5}, {WST}")
        b.dma(OX+7, sWQ, sT5, flags=(f"offset:{(i % 4)*1024}" if i % 4 else ""))
    srd(b, sDW, 66, 9*192); srd(b, sX, 64, XBYTES, 192)
    d0 = D0
    b.bld("buffer_load_ushort", d0, 1, T0, sDW, "0", 0); b.bld("buffer_load_ushort", d0+1, 1, T0, sDW, "0", 384)
    b.bld("buffer_load_ushort", d0+2, 1, T0, sDW, "0", 128); b.bld("buffer_load_ushort", d0+3, 1, T0, sDW, "0", 128+384)
    b.bld("buffer_load_ushort", d0+4, 1, T1, sDW, "0", 8*192)
    dma_issue(b); b.x(f"s_add_u32 {sSTEP}, {sSTEP}, 1")
    b.x(f"s_lshr_b32 {sT1}, {sWAVE}, 1; s_add_u32 {sT0}, {sWX}, {sT1}; s_mul_i32 {sT1}, {sT1}, 1344; s_add_u32 {sT1}, {sT1}, {sO}; s_add_u32 {sT1}, {sT1}, {3*ROWB + 384}")
    for i in range(6):
        b.x(f"s_cmp_gt_u32 {sT0}, {72 - 2*i}; s_cselect_b32 {sT2}, {6*ROWB}, 0; s_add_u32 {sT2}, {sT2}, {sT1}")
        b.bld("buffer_load_dwordx4", XR + 4*i, 4, 6, sX, sT2, 0)
        b.x(f"s_add_u32 {sT1}, {sT1}, 2688")
    srd(b, sWO, 70, 96*192); srd(b, sOUT, 72, XBYTES)
    if STAMP: srd(b, sWS, 74, 1 << 28)
    out += finalize(b.l)
    out += stamp()
    b = B()
    b.x("s_mov_b32 s40, 0xffff0000; s_mov_b32 s41, 0; s_mov_b32 s42, 0; s_mov_b32 s43, 0xffff; s_mov_b32 s44, 0; s_mov_b32 s45, 0xffff0000",
        f"s_mov_b32 s46, 0x10001; s_mov_b32 s47, 0x10001; s_mov_b32 {sEPS}, {f32(9216.0*1e-5)}")
    cw_id(b, t0)
    b.x(f"v_lshrrev_b32 {t1}, 3, {n}; v_lshrrev_b32 {t2}, 1, {g}; v_cmp_eq_u32_e64 {sCM}, {t1}, {t2}; v_cndmask_b32_e64 {t0}, 8, {t0}, {sCM}",
        f"v_mul_u32_u24 {t2}, 17, {t2}; v_add_u32 {t0}, {t0}, {t2}; v_lshlrev_b32 {t0}, 4, {t0}; v_add_u32 v{vCW}, {CONVW}, {t0}",
        f"v_lshrrev_b32 {t0}, 2, {n}; v_cmp_eq_u32_e64 {sCM}, {t0}, {g}; v_cndmask_b32_e64 {t1}, 16, {n}, {sCM}",
        f"v_lshlrev_b32 {t1}, 3, {t1}; v_add_u32 v{vCW2}, {CONVW2}, {t1}",
        f"v_and_b32 {t1}, 3, {n}; v_mul_u32_u24 v{vIdx}, 0x5555, {t1}",
        f"v_lshl_add_u32 {t0}, {t0}, 4, {n}; v_lshlrev_b32 {t0}, 4, {t0}; v_lshl_add_u32 v{vDiag}, {t1}, 2, {t0}",
        f"v_cmp_eq_u32_e64 {sCM}, 2, {t1}")
    for i in range(4): b.x(f"v_cndmask_b32_e64 v{VONES+i}, 0, 1.0, {sCM}; v_mov_b32 v{ONES+i}, 0x3f803f80")
    b.x(f"s_lshl_b32 {sT0}, {sWAVE}, 7; s_add_u32 {sT0}, {sT0}, {PXS}",
        f"v_lshlrev_b32 {t0}, 5, {g}; v_add_u32 v{vPXdA}, {sT0}, {t0}",
        f"v_lshrrev_b32 {t0}, 2, {n}; v_lshlrev_b32 {t0}, 5, {t0}; v_lshl_add_u32 {t0}, {g}, 3, {t0}",
        f"v_lshl_add_u32 {t0}, {t1}, 1, {t0}; v_add_u32 v{vPXw}, {sT0}, {t0}",
        f"v_mov_b32 v47, 0; v_mov_b32 v55, 0",
        f"s_mul_i32 {sT2}, {sWAVE}, 3072; s_lshl_b32 {sT3}, {sWAVE}, 11; s_cmp_eq_u32 {sWAVE}, 3",
        f"s_cselect_b32 {sT2}, {Y1 - H}, {sT2}; s_cselect_b32 {sT3}, {TAB + 4*XST - Y0}, {sT3}; s_cselect_b32 {sT4}, 0, -1",
        f"v_lshlrev_b32 {t0}, 4, {ln}; v_add_u32 v{vOwn}, {sT2}, {t0}; v_add_u32 v{vDiag}, {sT2}, v{vDiag}",
        f"v_lshrrev_b32 {t0}, 1, {g}; v_lshl_add_u32 {t0}, {t0}, 4, {n}; v_and_b32 {t2}, 1, {g}; v_lshl_add_u32 {t0}, {t0}, 1, {t2}; v_lshlrev_b32 {t0}, 3, {t0}",
        f"v_and_b32 {t0}, {sT4}, {t0}; v_add_u32 v{vY}, {sT3}, {t0}",
        f"s_mul_i32 {sT0}, {sWAVE}, {TABH}; s_add_u32 {sT5}, {sT0}, {TAB}",
        f"v_lshlrev_b32 {t0}, 4, {g}; v_add_u32 v{vTab}, {sT5}, {t0}",
        f"v_lshlrev_b32 {t0}, 1, {n}; v_add_u32 {t0}, 0x80, {t0}; v_cmp_eq_u32_e64 {sCM}, 0, {g}",
        f"v_cndmask_b32_e64 v{vTabV}, 12, {t0}, {sCM}; v_add_u32 v{vTabV}, {sT5}, v{vTabV}")
    b.x(f"s_lshl_b32 {sT0}, {sWAVE}, 4; s_min_u32 {sT1}, {sWAVE}, 1; s_add_u32 {sT0}, {sT0}, {sT1}")
    tok_rc(b, sT0)
    b.x(f"v_mul_u32_u24 {t0}, 511, {t1}; v_add_u32 {t0}, {t0}, {t2}; v_mul_u32_u24 {t0}, 0xc0, {t0}; v_lshl_add_u32 {t0}, {g}, 3, {t0}; v_add_u32 v{vOutA}, 0x80, {t0}",
        f"v_mul_u32_u24 {t0}, 9, {t1}; v_add_u32 {t0}, {t0}, {t2}; v_mul_u32_u24 {t0}, {PIX}, {t0}; v_add_u32 {t0}, {PATCH0}, {t0}",
        f"s_sub_u32 {sT0}, {sNW}, 1; v_min_u32 {t1}, {sT0}, {n}; v_cmp_lt_u32 vcc, 7, {t1}; v_mov_b32 {t2}, {TAB - 8*XST - O}; v_cndmask_b32_e64 {t2}, 0, {t2}, vcc",
        f"v_mul_u32_u24 {t1}, {XST}, {t1}; v_add_u32 {t1}, {t1}, {t2}; v_add_u32 {t1}, {O}, {t1}",
        f"s_cmp_eq_u32 {sWAVE}, 3; s_cselect_b64 vcc, -1, 0; s_cselect_b32 {sT0}, 0, {PROW - 3*PIX}; s_cselect_b32 {sT1}, 0, 16; s_add_u32 {sT1}, {sT1}, 0xc0",
        f"v_cndmask_b32_e64 {t0}, {t0}, {t1}, vcc")
    for u, dst in ((0, vCv0), (1, vCv1)):
        b.x(f"v_lshl_add_u32 {t1}, {g}, 1, {u}; v_mul_u32_u24 {t2}, 11, {t1}; v_lshrrev_b32 {t2}, 5, {t2}",
            f"v_mul_u32_u24 {t1}, {sT1}, {t1}; v_mul_u32_u24 {t2}, {sT0}, {t2}; v_add3_u32 v{dst}, {t0}, {t1}, {t2}")
    b.x(f"s_lshl_b32 {sT1}, {sT1}, 3; s_lshl_b32 {sT0}, {sT0}, 1; s_add_u32 {sT0}, {sT0}, {sT1}",
        f"v_lshl_add_u32 {t0}, {g}, 3, {t0}; v_add_u32 v{vConv}, {sT0}, {t0}")
    b.x(f"v_mov_b32 {t4}, 0x3f80; v_lshlrev_b32 {t3}, 3, {g}")
    build_sel(b, Q[0], n)
    b.x(f"v_lshrrev_b32 {t0}, 2, {n}; v_lshlrev_b32 {t0}, 1, {t0}; v_and_b32 {t1}, 1, {n}; v_add3_u32 {t0}, {t0}, {t1}, 16",
        f"v_and_b32 {t1}, 2, {n}; v_lshlrev_b32 {t1}, 5, {t1}; v_add_u32 v1, {t0}, {t1}",
        f"v_xor_b32 {t1}, 64, {t1}; v_add_u32 v2, {t0}, {t1}")
    build_sel(b, Q[1], "v1")
    build_sel(b, Q[2], "v2")
    b.x(f"s_lshr_b32 {sT0}, {sWAVE}, 1; s_mul_i32 {sT0}, {sT0}, {XST}; s_lshl_b32 {sT6}, {sT6}, 4; s_add_u32 {sT0}, {sT0}, {sT6}; s_add_u32 {sT0}, {sT0}, {O}",
        f"v_lshlrev_b32 v6, 4, {ln}; v_add_u32 v6, {sT0}, v6",
        f"s_mul_i32 {sT1}, {sWAVE}, 48; s_add_u32 {sT1}, {sT1}, {WST}; v_mul_u32_u24 {t0}, {576}, {n}; v_lshl_add_u32 {t0}, {g}, 4, {t0}; v_add_u32 {t0}, {sT1}, {t0}")
    out += finalize(b.l)
    out += stamp()
    b = B()
    b.raw("s_waitcnt vmcnt(16)"); b.raw("s_barrier")
    for kb in range(6):
        for w in range(3):
            b.dsr("ds_read_b128", wraw(w, kb), 4, T0, kb*16*576 + 192*w)
    b.raw("s_waitcnt lgkmcnt(0)"); b.raw("s_barrier")
    b.ext(stamp())
    zero_chunks(b)
    b.raw("s_waitcnt vmcnt(11)")
    convw_build(b)
    out += finalize(b.l)
    b = B()
    wprep(b)
    l, _ = schedule(b.l, SP)
    b = B()
    b.x(f"v_lshlrev_b32 v{vL16}, 4, {ln}",
        f"s_lshr_b32 {sT0}, {sWAVE}, 1; s_lshl_b32 {sT0}, {sT0}, 10; s_and_b32 {sT1}, {sWAVE}, 1; s_lshl_b32 {sT1}, {sT1}, 3; s_add_u32 {sT0}, {sT0}, {sT1}",
        f"v_add_u32 v{vOw1}, {sT0}, v{vL16}",
        f"s_lshl_b32 {sT0}, {sWAVE}, 2; v_add_u32 v{vOw2}, {sT0}, v{vL16}",
        "v_mov_b32 v19, 0; v_mov_b32 v23, 0; v_mov_b32 v27, 0")
    out += finalize([O_("s_nop 1")] + l + b.l) + stamp()
    b = B()
    b.raw("s_waitcnt vmcnt(0)")
    b.x(f"s_mov_b32 {sCMlo}, -1; s_mov_b32 {sCMhi}, 0x3fffff; s_mov_b64 exec, {sCM}")
    for i in range(6):
        b.dsw("ds_write_b128", 6, XR + 4*i, 4, 2*i*XST + (0 if i < 4 else TAB - 8*XST - O))
    b.x("s_mov_b64 exec, -1")
    dma_issue(b); b.x(f"s_add_u32 {sSTEP}, {sSTEP}, 1")
    out += finalize(b.l)
    out += [O_("s_waitcnt lgkmcnt(0)")] + stamp() + [O_("s_barrier")]
    b = B()
    p1(b)
    l, _ = schedule(b.l, SP)
    out += finalize(l) + stamp()
    out += [O_("s_waitcnt vmcnt(0) lgkmcnt(0)"), O_("s_barrier")]
    b = B()
    for s in range(3):
        b.dsr("ds_read_b128", HB[0] + 4*s, 4, vL16, Y1 + s*1024)
    wo_addr(b, 2, 3)
    b.x(f"s_cmp_eq_u32 {sWAVE}, 3; s_cselect_b32 {sT6}, 0, 0x80")
    wo_loads(b, 0, 2, 3, sT6)
    b.raw(f"s_cmp_lg_u32 {sWAVE}, 3"); b.raw("s_cbranch_scc1 L_pw")
    xaddr(b, "v1", t0, t1, sWX, sO)
    b.x(f"v_lshl_add_u32 v1, {g}, 3, v1; v_mov_b32 v{vPXdB}, v{vPXdA}")
    for t in range(6):
        b.bst("buffer_store_dwordx2", YA[t//2] + 2*(t & 1), 2, 1, sOUT, "0", 32*t)
    b.x(f"s_mov_b32 {sT6}, 64")
    wo_loads(b, 1, 2, 3, sT6)
    for j in range(3):
        tok_rc(b, 16*j + (1 if j else 0))
        b.x(f"v_mul_u32_u24 {t0}, 511, {t1}; v_add_u32 {t0}, {t0}, {t2}; v_mul_u32_u24 {t0}, 0xc0, {t0}; v_lshl_add_u32 v{vOutB[j]}, {g}, 4, {t0}")
    b.x(f"v_mov_b32 v{vYB}, v{vL16}")
    b.raw("L_pw:")
    c = B()
    qkv_tile(c, HB[0], Pool([128, 132, 136, 72, 76]), K[0], Q[0], VA_, VB_)
    c.x(f"v_mul_u32_u24 v1, 0xc0, {n}; v_add_u32 v1, v1, v{vTab}; v_mul_u32_u24 v2, 0x300, {g}; v_lshl_add_u32 v2, {n}, 1, v2; v_add_u32 v2, {sT5}, v2")
    for i in range(8): c.x(f"v_mov_b32 v{OX+i}, 0")
    b.ext(schedule(c.l, SP)[0])
    b.x(f"s_mov_b32 {sCMlo}, 0x07ff07ff; s_mov_b32 {sCMhi}, 0x07ff07ff; s_mov_b64 exec, {sCM}")
    b.dsw("ds_write_b128", 1, K[0], 4, 0); b.dsw("ds_write_b128", 1, Q[0], 4, 64)
    b.x(f"s_mov_b32 {sCMlo}, -1; s_mov_b32 {sCMhi}, 0xffff; s_mov_b64 exec, {sCM}")
    for vb, off in ((VA_, 128), (VB_, 160)):
        b.dsw("ds_write_b16", 2, vb, 1, off); b.dsw("ds_write_b16_d16_hi", 2, vb, 1, off + 192); b.dsw("ds_write_b16", 2, vb+1, 1, off + 384)
    b.x(f"s_mov_b32 {sCMhi}, 0; s_mov_b64 exec, {sCM}")
    for vb, off in ((VA_, 128), (VB_, 160)):
        b.dsw("ds_write_b16_d16_hi", 2, vb+1, 1, off + 576)
    b.x("s_mov_b64 exec, -1")
    b.raw(f"s_cmp_eq_u32 {sWAVE}, 3"); b.raw("s_cbranch_scc1 L_loopB")
    out += finalize(b.l)
    return out

def wo_first():
    global n, g, t0, t1, t2, t3, t4
    sv = (n, g, t0, t1, t2, t3, t4)
    n, g, t0, t1, t2, t3, t4 = [f"v{i}" for i in range(92, 99)]
    b = B()
    b.x(f"v_lshrrev_b32 {g}, 8, v{vL16}; v_bfe_u32 {n}, v{vL16}, 4, 4; v_mov_b32 {t4}, 0x3f80; v_lshlrev_b32 {t3}, 3, {g}",
        f"s_cmp_eq_u32 {sWAVE}, 3; s_cselect_b32 {sT0}, 12, 0; s_cselect_b32 {sT1}, 4, 16",
        f"v_and_b32 {t0}, {sT0}, {n}; v_add_u32 {t0}, {t0}, {n}")
    build_sel(b, 56, t0)
    b.x(f"v_add_u32 {t0}, {sT1}, {t0}")
    build_sel(b, 64, t0)
    c = B(); wo_prep(c, 0, [56, 64], Pool(list(range(100, 140, 4))))
    d = B(); wo_prep(d, 1, [56, 64], Pool(list(range(100, 140, 4))))
    n, g, t0, t1, t2, t3, t4 = sv
    return finalize([O_("L_first:"), O_("s_nop 1")] + b.l + [O_("s_waitcnt vmcnt(5)")] + schedule(c.l, SP)[0] +
                    [O_(f"s_cmp_lg_u32 {sWAVE}, 3"), O_("s_cbranch_scc1 L_tA")] + schedule(d.l, SP)[0] + [O_("s_branch L_tB")])

def epilogue():
    global n, g
    out = []
    b = B()
    b.raw("L_last:")
    b.ext(stamp())
    n, g = "v12", "v13"
    b.x(f"v_lshrrev_b32 {g}, 8, v{vL16}; v_bfe_u32 {n}, v{vL16}, 4, 4",
        f"s_lshl_b32 {sT0}, {sWAVE}, 7; s_add_u32 {sT0}, {sT0}, {PXS}; v_lshlrev_b32 v2, 5, {g}; v_add_u32 v2, {sT0}, v2")
    p2_tail(b, 2)
    b.x(f"s_and_b32 {sT1}, {sNW}, 1; s_lshl_b32 {sPAR}, {sT1}, 15",
        f"v_add_u32 v2, {sPAR}, v{vOw1}; v_add_u32 v3, {sPAR}, v{vOw2}; v_add_u32 v4, {sPAR}, v{vL16}")
    xaddr(b, "v5", "v0", "v6", sW0, sW1)
    b.x(f"v_lshl_add_u32 v6, {g}, 3, v5; v_lshl_add_u32 v5, {g}, 4, v5; v_add_u32 v6, 0x80, v6")
    for so in range(2):
        b.bld("buffer_load_dwordx4", 116 + 4*so, 4, 5, sOUT, "0", 64*so, flags="sc1")
    for t in range(2):
        b.bld("buffer_load_dwordx2", 100 + 2*t, 2, 6, sOUT, "0", 32*t, flags="sc1")
    onorm(b, OX, OX+4, 1, 0, check=False, base=Y0, aw=(2, 3))
    b.raw("s_waitcnt vmcnt(0) lgkmcnt(0)"); b.raw("s_barrier")
    b.raw(f"s_cmp_eq_u32 {sWAVE}, 3"); b.raw("s_cbranch_scc1 L_lastB")
    p3a(b)
    b.raw(f"s_cmp_lg_u32 {sWAVE}, 0"); b.raw("s_cbranch_scc1 L_end")
    for t in range(2):
        for i in range(2):
            b.x(f"v_lshlrev_b32 v{92 + 4*t + 2*i}, 16, v{100 + 2*t + i}; v_and_b32 v{92 + 4*t + 2*i + 1}, 0xffff0000, v{100 + 2*t + i}")
    p3a(b, obase=Y0, addr=4, x0=92, vout=6, soff="0")
    b.raw("s_branch L_end")
    out += finalize([O_("s_nop 1")] + b.l)
    b = B()
    p3b_tile(b, (104, 116, [124, 128, 72, 76]), 4, Y0, lambda b, YB: None, 5, "0")
    b.ext(t_b(tail=False))
    l, _ = schedule(b.l, SP)
    out += [O_("L_lastB:")] + finalize(l)
    return out

def main_loop():
    out = []
    pr = opt("prio", "0,1,2").split(",")
    for role, nst in (("A", 2), ("B", 6)):
        out.append(O_(".p2align 6")); out.append(O_(f"L_loop{role}:"))
        out += stamp()
        if role == "A": blk = r1_a()
        else:
            blk = B(); p2_fast(blk, "B")
        l, t = schedule(blk.l, SP)
        k = int(len(l)*opt("pfrac", 0.5))
        while l[k-1].kind not in MF: k += 1
        l = [O_(f"s_setprio {pr[0]}")] + l[:k] + [O_(f"s_setprio {pr[1]}")] + l[k:] + [O_(f"s_setprio {pr[2]}")]
        f, q = finalize(l + [O_(f"s_cmp_lg_u64 {sBAD}, 0"), O_("s_cbranch_scc1 L_slow")], ret_q=True)
        print("P2" + role, stats(f), t, file=sys.stderr)
        out += f
        out.append(O_(f"L_tail{role}:"))
        out += [O_(f"s_add_u32 {sSTEP}, {sSTEP}, 1"), O_(f"s_cmp_eq_u32 {sSTEP}, {sNW}"), O_("s_cbranch_scc1 L_last"),
                O_(f"s_cmp_eq_u32 {sSTEP}, 1"), O_("s_cbranch_scc1 L_first"), O_(f"L_t{role}:")]
        out += stamp()
        l, t = schedule((t_a() if role == "A" else t_b()).l, SP)
        f2 = finalize(l + stamp() + [O_(f"s_waitcnt vmcnt({nst}) lgkmcnt(0)")] + stamp() + [O_("s_barrier"), O_(f"s_branch L_loop{role}")], q0=q, pre=f[-12:])
        print("T" + role, stats(f2), t, file=sys.stderr)
        out += f2
    out += wo_first()
    out.append(O_("L_slow:"))
    out += finalize([O_("s_nop 7")] + p2_slow().l + [O_("s_waitcnt lgkmcnt(0)"), O_("s_nop 7"), O_(f"s_cmp_eq_u32 {sWAVE}, 3"), O_("s_cbranch_scc1 L_tailB"), O_("s_branch L_tailA")])
    return out

def build(path):
    hdr = open("cdna_kernels/" + NAME + ".s.ref").read().split("\n")
    head = [l for l in hdr if l.startswith(";") and "@launch" not in l]
    ml = main_loop()
    dbg = opt("dbg", "")
    if dbg:
        def drop(x):
            t = x.text
            if "dma" in dbg and x.kind == "dma": return True
            if "st" in dbg.split(",") and x.kind == "vst": return True
            if "conv" in dbg and x.kind == "dsr" and any(f", v{r} " in t + " " for r in (vConv, vCv0, vCv1, vCW2)) : return True
            if "cw" in dbg.split(",") and x.kind == "dsr" and f", v{vCW} " in t + " " and "offset:2" not in t[:0]: return True
            if "bar" in dbg and t == "s_barrier": return True
            if "dsw" in dbg and x.kind == "dsw": return True
            if "exp" in dbg and t.startswith("v_exp"): return True
            if "slowbr" in dbg and "L_slow" in t and "cbranch" in t: return True
            return False
        ml = [x for x in ml if not drop(x)]
    body = prologue() + ml + epilogue()
    endtxt = ""
    if STAMP:
        endtxt = text([O_("s_waitcnt vmcnt(0)")] + stamp() + [O_("s_memrealtime s[84:85]"), O_("s_waitcnt lgkmcnt(0)"), O_(f"v_writelane_b32 v{vST}, s84, 63"), O_(f"v_writelane_b32 v{vST}, s80, 61"), O_("s_lshl_b32 s83, s2, 2"), O_(f"s_add_u32 s83, s83, {sWAVE}"), O_("s_lshl_b32 s83, s83, 8"), O_(f"v_lshrrev_b32 v0, 2, v{vL16}"),
                      O_(f"buffer_store_dword v{vST}, v0, s[{sWS}:{sWS+3}], s83 offen")])
    src = "\n".join(head) + f"\n; @launch grid=(512,1,1) block=(256,1,1) lds={LDS_BYTES}\n"
    src += f""".amdgcn_target "amdgcn-amd-amdhsa--gfx950"
.text
.globl {NAME}_kernel
.p2align 8
.type {NAME}_kernel,@function
{NAME}_kernel:
{text(body)}
L_end:
{endtxt}
L_end2:
    s_endpgm
.section .rodata,"a"
.p2align 6
.amdhsa_kernel {NAME}_kernel
  .amdhsa_next_free_vgpr 256
  .amdhsa_next_free_sgpr 96
  .amdhsa_accum_offset 256
  .amdhsa_group_segment_fixed_size 0
  .amdhsa_kernarg_size 56
  .amdhsa_user_sgpr_count 2
  .amdhsa_user_sgpr_kernarg_segment_ptr 1
  .amdhsa_system_sgpr_workgroup_id_x 1
.end_amdhsa_kernel
"""
    open(path, "w").write(src)

if __name__ == "__main__":
    args = [a for a in sys.argv[1:] if not a.startswith("--")]
    build(args[0] if args else "cdna_kernels/" + NAME + ".s")
```
